```python
import torch

def _softmax(x, axis=-1):
    return torch.softmax(x, dim=axis)
def _gelu(x):
    return torch.nn.functional.gelu(x, approximate="tanh")
def _silu(x):
    return torch.nn.functional.silu(x)
def _sigmoid(x):
    return torch.sigmoid(x)
def _layernorm(x, axis=-1, eps=1e-5):
    m = x.mean(dim=axis, keepdim=True)
    v = x.var(dim=axis, keepdim=True, unbiased=False)
    return (x - m) / torch.sqrt(v + eps)
def _scatter_add(tgt, idx, src, axis=0):
    return tgt.clone().index_add_(axis, idx, src)
def _segment_sum(src, seg, n):
    out = torch.zeros((n,) + src.shape[1:], dtype=src.dtype)
    return out.index_add_(0, seg, src)
def _pad(x, pw):
    flat = tuple(v for pair in reversed(pw) for v in pair)
    return torch.nn.functional.pad(x, flat)

kernel_name = 'standalone__gqa_block_cached__near_ridge'

def setup_inputs():

    _w = (lambda a: (lambda t: t.to(torch.bfloat16) if t.is_floating_point() else t)(torch.as_tensor(a)))
    B, Sq, D = 8, 128, 448
    Hq, Hkv, Sk, Dh = 16, 8, 1024, 256
    assert Hq % Hkv == 0, (Hq, Hkv)
    return {
        "x": _w((lambda *s: torch.randn(*s, dtype=torch.bfloat16) * 0.8)(B, Sq, D)),
        "k_cache": _w((lambda *s: torch.randn(*s, dtype=torch.bfloat16) * 0.8)(B, Hkv, Sk, Dh)),
        "v_cache": _w((lambda *s: torch.randn(*s, dtype=torch.bfloat16) * 0.05)(B, Hkv, Sk, Dh)),
        "wq": _w((lambda *s: torch.randn(*s, dtype=torch.bfloat16) * 0.8)(D, Hq * Dh) * (D ** -0.5)),
        "wo": _w((lambda *s: torch.randn(*s, dtype=torch.bfloat16) * 0.05)(Hq * Dh, D) * ((Hq * Dh) ** -0.5)),
    }

def reference(x, k_cache, v_cache, wq, wo):
    B, Sq, D = x.shape
    Hq, Dh = 16, 256
    Hkv = k_cache.shape[1]
    rep = Hq // Hkv
    q = (lambda x, *d: x.permute(*d))((x @ wq).reshape(B, Sq, Hq, Dh), 0, 2, 1, 3)
    k = (lambda x, n, axis: torch.repeat_interleave(x, n, dim=axis))(k_cache, rep, axis=1)
    v = (lambda x, n, axis: torch.repeat_interleave(x, n, dim=axis))(v_cache, rep, axis=1)
    scores = torch.einsum("bhqd,bhkd->bhqk", q, k) * (Dh ** -0.5)
    p = _softmax(scores, axis=-1)
    o = torch.einsum("bhqk,bhkd->bhqd", p, v)
    return (lambda x, *d: x.permute(*d))(o, 0, 2, 1, 3).reshape(B, Sq, Hq * Dh) @ wo
```

```python
import sys, math
def gen(waves=4, depth=8, supert=0, nt="", mode="share", chunk=4, reps=1):
    NAME = "standalone__gqa_block_cached__near_ridge_kernel"
    stepb = waves*chunk*1024
    per = 512*1024 if mode != "quarter" else 128*1024
    half = per // stepb
    ringsteps = 131072 // stepb
    L = []
    A = L.append
    A(f"; @launch grid=(256,1,1) block=({waves*64},1,1) lds=131072")
    A('.amdgcn_target "amdgcn-amd-amdhsa--gfx950"')
    A(".text"); A(f".globl {NAME}"); A(".p2align 8"); A(f".type {NAME},@function"); A(f"{NAME}:")
    A("s_cmp_ge_u32 s2, 256"); A("s_cbranch_scc1 L_end")
    A("s_memrealtime s[20:21]")
    A("s_memtime s[40:41]")
    A("s_load_dwordx4 s[4:7], s[0:1], 8")
    A("s_load_dwordx2 s[16:17], s[0:1], 56")
    A("v_lshrrev_b32 v2, 6, v0"); A("s_nop 0"); A("v_readfirstlane_b32 s24, v2")
    A("v_and_b32 v1, 63, v0"); A("v_lshlrev_b32 v1, 4, v1")
    A("s_and_b32 s25, s2, 7"); A("s_lshl_b32 s25, s25, 3")
    if mode != "hot":
        A("s_lshr_b32 s26, s2, 5"); A("s_add_u32 s25, s25, s26")
    A("s_lshr_b32 s26, s2, 3"); A("s_and_b32 s26, s26, 3")
    A("s_waitcnt lgkmcnt(0)")
    A("s_lshl_b32 s27, s25, 19")
    if mode == "quarter":
        A("s_lshl_b32 s29, s26, 17"); A("s_add_u32 s27, s27, s29")
    A("s_add_u32 s8, s4, s27"); A("s_addc_u32 s9, s5, 0"); A(f"s_mov_b32 s10, {per}"); A("s_mov_b32 s11, 0x20000")
    A("s_add_u32 s12, s6, s27"); A("s_addc_u32 s13, s7, 0"); A(f"s_mov_b32 s14, {per}"); A("s_mov_b32 s15, 0x20000")
    A(f"s_mul_i32 s28, s24, {chunk*1024}")
    for rep in range(reps):
      for ph, srd in ((0, "s[8:11]"), (1, "s[12:15]")):
        A("s_mov_b32 s30, 0")
        A(f"L_loop{ph}_{rep}:")
        if supert:
            lg = int(math.log2(supert))
            A(f"s_lshr_b32 s31, s30, {lg}"); A("s_add_u32 s31, s31, s26"); A("s_and_b32 s31, s31, 3"); A(f"s_lshl_b32 s31, s31, {lg}")
            A(f"s_andn2_b32 s32, s30, {3<<lg}"); A("s_or_b32 s31, s31, s32")
        else:
            A("s_mov_b32 s31, s30")
        A(f"s_mul_i32 s31, s31, {stepb}"); A("s_add_u32 s31, s31, s28")
        A(f"s_and_b32 s33, s30, {ringsteps-1}"); A(f"s_mul_i32 s33, s33, {stepb}"); A("s_add_u32 s33, s33, s28")
        A("s_mov_b32 m0, s33"); A("s_nop 0")
        for c in range(chunk):
            A(f"buffer_load_dwordx4 v1, {srd}, s31 offen offset:{c*1024} {nt} lds")
        A(f"s_waitcnt vmcnt({chunk*(depth-1)})")
        A("s_add_u32 s30, s30, 1"); A(f"s_cmp_lt_u32 s30, {half}"); A(f"s_cbranch_scc1 L_loop{ph}_{rep}")
      if rep == 0 and reps > 1:
        A("s_memrealtime s[44:45]")
    A("s_waitcnt vmcnt(0)")
    A("s_barrier")
    A("s_memrealtime s[22:23]")
    A("s_memtime s[42:43]")
    A("s_waitcnt lgkmcnt(0)")
    if reps == 1:
        A("s_mov_b32 s44, s22"); A("s_mov_b32 s45, s23")
    A("s_sub_u32 s42, s42, s40")
    A("s_mov_b32 s46, 0x1999999a"); A("s_mul_hi_u32 s42, s42, s46")
    A("s_add_u32 s42, s42, s20"); A("s_addc_u32 s43, s21, 0")
    A("v_mov_b32 v4, s20"); A("v_mov_b32 v5, s21"); A("v_mov_b32 v6, s42"); A("v_mov_b32 v7, s43")
    A("v_mov_b32 v8, s44"); A("v_mov_b32 v9, s45"); A("v_mov_b32 v10, s22"); A("v_mov_b32 v11, s23")
    A("s_lshl_b32 s3, s2, 5"); A("v_mov_b32 v3, s3")
    A("v_cmp_eq_u32 vcc, 0, v0"); A("s_and_saveexec_b64 s[34:35], vcc"); A("s_cbranch_execz L_end")
    A("global_store_dwordx4 v3, v[4:7], s[16:17]")
    A("global_store_dwordx4 v3, v[8:11], s[16:17] offset:16")
    A("L_end:"); A("s_endpgm")
    A('.section .rodata,"a"'); A(".p2align 6"); A(f".amdhsa_kernel {NAME}")
    A(".amdhsa_next_free_vgpr 16"); A(".amdhsa_next_free_sgpr 48"); A(".amdhsa_accum_offset 16")
    A(".amdhsa_group_segment_fixed_size 0"); A(".amdhsa_kernarg_size 64"); A(".amdhsa_user_sgpr_count 2")
    A(".amdhsa_user_sgpr_kernarg_segment_ptr 1"); A(".amdhsa_system_sgpr_workgroup_id_x 1"); A(".end_amdhsa_kernel")
    return "\n".join(L) + "\n"
if __name__ == "__main__":
    cfgs = []
    for waves in (4, 8):
        for depth in (2, 4, 8):
            fn = f"h_w{waves}_d{depth}.s"
            open(fn, "w").write(gen(waves=waves, depth=depth, mode="hot", reps=2)); cfgs.append(fn)
    for waves in (4,):
        for depth in (4, 8):
            for nt in ("", "nt", "sc1", "sc0 sc1", "sc1 nt"):
                for mode in ("quarter", "share"):
                    fn = f"{mode}_w{waves}_d{depth}_{nt.replace(' ','')}.s"
                    open(fn, "w").write(gen(waves=waves, depth=depth, mode=mode, nt=nt, supert=(1 if mode=="share" else 0))); cfgs.append(fn)
    print(" ".join(cfgs))
```

```python
import sys
sys.path.insert(0, ".")
HEAD = '''.amdgcn_target "amdgcn-amd-amdhsa--gfx950"
.text
'''
def kd(name, vgpr, sgpr=64):
    acc = (vgpr + 3)//4*4
    return f'''.section .rodata,"a"
.p2align 6
.amdhsa_kernel {name}
  .amdhsa_next_free_vgpr {vgpr}
  .amdhsa_next_free_sgpr {sgpr}
  .amdhsa_accum_offset {acc}
  .amdhsa_group_segment_fixed_size 0
  .amdhsa_kernarg_size 64
  .amdhsa_user_sgpr_count 2
  .amdhsa_user_sgpr_kernarg_segment_ptr 1
  .amdhsa_system_sgpr_workgroup_id_x 1
.end_amdhsa_kernel
.text
'''
def start(name):
    return f".globl {name}\n.p2align 8\n.type {name},@function\n{name}:\n"
def srd(d, b, size):
    return [f"s_mov_b32 s{d}, s{b}", f"s_and_b32 s{d+1}, s{b+1}, 0xffff", f"s_mov_b32 s{d+2}, {size}", f"s_mov_b32 s{d+3}, 0x20000"]

QOFF = 0
OOFF = 8<<20

def gemm(name, a_slot, a_off, a_size, lda, b_slot, b_size, ldb, c_slot, c_off, c_size, ldc, K, ntn, ntiles):
    L = []; A = L.append
    A(f"s_cmp_ge_u32 s2, {ntiles}"); A(f"s_cbranch_scc1 {name}_end")
    A(f"s_load_dwordx2 s[4:5], s[0:1], {a_slot*8}"); A(f"s_load_dwordx2 s[6:7], s[0:1], {b_slot*8}"); A(f"s_load_dwordx2 s[8:9], s[0:1], {c_slot*8}")
    magic = (2**32 + ntn - 1)//ntn
    A(f"s_mov_b32 s10, {magic}"); A("s_mul_hi_u32 s11, s2, s10"); A(f"s_mul_i32 s10, s11, {ntn}"); A("s_sub_u32 s10, s2, s10")
    A("s_waitcnt lgkmcnt(0)")
    A(f"s_add_u32 s4, s4, {a_off}"); A("s_addc_u32 s5, s5, 0")
    A(f"s_add_u32 s8, s8, {c_off}"); A("s_addc_u32 s9, s9, 0")
    L += srd(12, 4, a_size) + srd(16, 6, b_size) + srd(20, 8, c_size)
    A("v_and_b32 v1, 31, v0"); A("v_lshrrev_b32 v2, 5, v0")
    A("s_lshl_b32 s24, s11, 5"); A("v_add_u32 v3, s24, v1"); A(f"s_mov_b32 s25, {lda}"); A("v_mul_lo_u32 v3, v3, s25"); A("v_lshlrev_b32 v4, 4, v2"); A("v_add_u32 v3, v3, v4")
    A("s_lshl_b32 s26, s10, 5"); A("v_add_u32 v5, s26, v1"); A("v_lshlrev_b32 v5, 1, v5"); A(f"s_mov_b32 s25, {ldb*8}"); A("v_mul_lo_u32 v6, v2, s25"); A("v_add_u32 v5, v5, v6")
    for i in range(16): A(f"v_mov_b32 v{16+i}, 0")
    A("s_mov_b32 s27, 0"); A("s_mov_b32 s28, 0"); A("s_mov_b32 s29, 0")
    A(f"{name}_loop:")
    A("buffer_load_dwordx4 v[8:11], v3, s[12:15], s28 offen")
    for j in range(8):
        A(f"s_add_u32 s30, s29, {j*ldb}")
        A(f"buffer_load_ushort v{32+j}, v5, s[16:19], s30 offen")
    A("s_waitcnt vmcnt(0)")
    for j in range(4): A(f"v_lshl_or_b32 v{12+j}, v{33+2*j}, 16, v{32+2*j}")
    A("s_nop 1")
    A("v_mfma_f32_32x32x16_bf16 v[16:31], v[8:11], v[12:15], v[16:31]")
    A("s_add_u32 s28, s28, 32"); A(f"s_add_u32 s29, s29, {16*ldb}")
    A("s_add_u32 s27, s27, 1"); A(f"s_cmp_lt_u32 s27, {K//16}"); A("s_nop 7"); A(f"s_cbranch_scc1 {name}_loop")
    A("s_nop 15")
    A("v_lshlrev_b32 v4, 2, v2"); A("v_add_u32 v4, s24, v4"); A(f"s_mov_b32 s25, {ldc}"); A("v_mul_lo_u32 v4, v4, s25")
    A("v_add_u32 v6, s26, v1"); A("v_lshlrev_b32 v6, 1, v6"); A("v_add_u32 v4, v4, v6")
    for i in range(16):
        A(f"v_cvt_pk_bf16_f32 v{32+i}, v{16+i}, v{16+i}")
    for i in range(16):
        A(f"s_mov_b32 s30, {((i&3)+8*(i>>2))*ldc}")
        A(f"buffer_store_short v{32+i}, v4, s[20:23], s30 offen")
    A(f"{name}_end:"); A("s_endpgm")
    return start(name) + "\n".join(L) + "\n" + kd(name, 48)

def attn(name):
    L = []; A = L.append
    A("s_cmp_ge_u32 s2, 512"); A(f"s_cbranch_scc1 {name}_end")
    A("s_load_dwordx4 s[4:7], s[0:1], 8"); A("s_load_dwordx2 s[8:9], s[0:1], 56")
    A("s_lshr_b32 s10, s2, 6"); A("s_lshr_b32 s11, s2, 2"); A("s_and_b32 s11, s11, 15"); A("s_and_b32 s3, s2, 3")
    A("s_lshr_b32 s24, s11, 1"); A("s_lshl_b32 s25, s10, 3"); A("s_add_u32 s24, s24, s25"); A("s_lshl_b32 s24, s24, 19")
    A("s_waitcnt lgkmcnt(0)")
    A("s_add_u32 s4, s4, s24"); A("s_addc_u32 s5, s5, 0"); A("s_add_u32 s6, s6, s24"); A("s_addc_u32 s7, s7, 0")
    L += srd(12, 4, 1<<19) + srd(16, 6, 1<<19) + srd(20, 8, 16<<20)
    A("v_and_b32 v1, 31, v0"); A("v_lshrrev_b32 v2, 5, v0")
    A("s_lshl_b32 s25, s10, 7"); A("s_lshl_b32 s26, s3, 5"); A("s_add_u32 s25, s25, s26"); A("v_add_u32 v3, s25, v1"); A("v_lshlrev_b32 v3, 13, v3")
    A("s_lshl_b32 s26, s11, 9"); A("v_add_u32 v3, s26, v3")
    A("v_lshlrev_b32 v4, 4, v2"); A("v_add_u32 v4, v3, v4")
    for j in range(16): A(f"buffer_load_dwordx4 v[{64+4*j}:{67+4*j}], v4, s[20:23], 0 offen offset:{j*32}")
    A("v_lshlrev_b32 v5, 9, v1"); A("v_lshlrev_b32 v6, 4, v2"); A("v_add_u32 v5, v5, v6")
    A("v_lshlrev_b32 v6, 11, v2"); A("v_lshlrev_b32 v7, 1, v1"); A("v_add_u32 v6, v6, v7")
    for i in range(128): A(f"v_mov_b32 v{128+i}, 0")
    A("v_mov_b32 v8, 0xff800000")
    A("v_mov_b32 v9, 0")
    A("s_mov_b32 s27, 0"); A("s_mov_b32 s28, 0")
    A("s_mov_b32 s31, 0x3db8aa3b")
    A(f"{name}_loop:")
    for i in range(16): A(f"v_mov_b32 v{16+i}, 0")
    for j in range(16):
        A(f"buffer_load_dwordx4 v[32:35], v5, s[12:15], s28 offen offset:{j*32}")
        A("s_waitcnt vmcnt(0)")
        A(f"v_mfma_f32_32x32x16_bf16 v[16:31], v[32:35], v[{64+4*j}:{67+4*j}], v[16:31]")
        A("s_nop 7")
    A("s_nop 15")
    A("v_mov_b32 v10, v8")
    for i in range(16): A(f"v_max_f32 v10, v10, v{16+i}")
    A("v_mov_b32 v11, v10"); A("s_nop 1"); A("v_permlane32_swap_b32 v10, v11"); A("s_nop 1"); A("v_max_f32 v10, v10, v11")
    A("v_sub_f32 v11, v8, v10"); A("v_mul_f32 v11, s31, v11"); A("v_exp_f32 v11, v11"); A("s_nop 1")
    A("v_mov_b32 v8, v10"); A("v_mul_f32 v9, v9, v11")
    for i in range(16):
        A(f"v_sub_f32 v{16+i}, v{16+i}, v8"); A(f"v_mul_f32 v{16+i}, s31, v{16+i}"); A(f"v_exp_f32 v{16+i}, v{16+i}"); A("s_nop 0"); A(f"v_add_f32 v9, v9, v{16+i}")
    for i in range(8): A(f"v_cvt_pk_bf16_f32 v{40+i}, v{16+2*i}, v{17+2*i}")
    for i in range(128): A(f"v_mul_f32 v{128+i}, v{128+i}, v11")
    for kk in range(2):
        for t in range(8):
            for j in range(8):
                key = kk*16 + (j&3) + 8*(j>>2)
                A(f"s_add_u32 s30, s28, {key*512 + t*64}")
                A(f"buffer_load_ushort v{48+j}, v6, s[16:19], s30 offen")
            A("s_waitcnt vmcnt(0)")
            for j in range(4): A(f"v_lshl_or_b32 v{32+j}, v{49+2*j}, 16, v{48+2*j}")
            A("s_nop 1")
            A(f"v_mfma_f32_32x32x16_bf16 v[{128+16*t}:{143+16*t}], v[32:35], v[{40+4*kk}:{43+4*kk}], v[{128+16*t}:{143+16*t}]")
            A("s_nop 7")
    A("s_nop 15")
    A("s_add_u32 s28, s28, 16384"); A("s_add_u32 s27, s27, 1"); A("s_cmp_lt_u32 s27, 32"); A(f"s_cbranch_scc1 {name}_loop")
    A("v_mov_b32 v11, v9"); A("s_nop 1"); A("v_permlane32_swap_b32 v9, v11"); A("s_nop 1"); A("v_add_f32 v9, v9, v11"); A("v_rcp_f32 v9, v9"); A("s_nop 1")
    for i in range(128): A(f"v_mul_f32 v{128+i}, v{128+i}, v9")
    A("v_lshlrev_b32 v4, 3, v2"); A("v_add_u32 v4, v3, v4"); A(f"s_mov_b32 s30, {OOFF}")
    for t in range(8):
        for g in range(4):
            r = 128+16*t+4*g
            A(f"v_cvt_pk_bf16_f32 v{r}, v{r}, v{r+1}"); A(f"v_cvt_pk_bf16_f32 v{r+1}, v{r+2}, v{r+3}")
            A(f"buffer_store_dwordx2 v[{r}:{r+1}], v4, s[20:23], s30 offen offset:{(t*32+8*g)*2}")
    A(f"{name}_end:"); A("s_endpgm")
    return start(name) + "\n".join(L) + "\n" + kd(name, 256)

def probe(name, mode, nt):
    import gen_stream2
    s = gen_stream2.gen(waves=4, depth=4, mode=mode, nt=nt, supert=(1 if mode == "share" else 0))
    lines = s.split("\n")
    i0 = [i for i, l in enumerate(lines) if l.endswith("_kernel:")][0]
    i1 = [i for i, l in enumerate(lines) if l.startswith("s_endpgm")][0]
    body = lines[i0+1:i1+1]
    body = [l.replace("s_lshl_b32 s3, s2, 5", "s_lshl_b32 s3, s2, 5\ns_add_u32 s3, s3, 0x2000000") for l in body]
    return start(name) + "\n".join(body) + "\n" + kd(name, 16)

def full(pr=None):
    hdr = []
    if pr: hdr.append("; @launch kernel=probe_kernel grid=(256,1,1) block=(256,1,1) lds=131072")
    hdr.append("; @launch kernel=qproj_kernel grid=(4096,1,1) block=(64,1,1) lds=0")
    hdr.append("; @launch kernel=attn_kernel grid=(512,1,1) block=(64,1,1) lds=0")
    hdr.append("; @launch kernel=oproj_kernel grid=(448,1,1) block=(64,1,1) lds=0")
    s = "\n".join(hdr) + "\n" + HEAD
    if pr: s += probe("probe_kernel", *pr)
    s += gemm("qproj_kernel", 0, 0, 1024*896, 896, 3, 448*8192, 8192, 7, QOFF, 8<<20, 8192, 448, 128, 4096)
    s += attn("attn_kernel")
    s += gemm("oproj_kernel", 7, OOFF, 8<<20, 8192, 4, 4096*896, 896, 5, 0, 1024*896, 896, 4096, 14, 448)
    return s
if __name__ == "__main__":
    open("simple0.s", "w").write(full())
    open("simple_qd.s", "w").write(full(("quarter", "")))
    open("simple_qnt.s", "w").write(full(("quarter", "nt")))
    open("simple_sd.s", "w").write(full(("share", "")))
    open("simple_snt.s", "w").write(full(("share", "nt")))
```

```python
import sys
sys.path.insert(0, ".")
HEAD = '''.amdgcn_target "amdgcn-amd-amdhsa--gfx950"
.text
'''
def kd(name, vgpr, sgpr=64):
    acc = (vgpr + 3)//4*4
    return f'''.section .rodata,"a"
.p2align 6
.amdhsa_kernel {name}
  .amdhsa_next_free_vgpr {vgpr}
  .amdhsa_next_free_sgpr {sgpr}
  .amdhsa_accum_offset {acc}
  .amdhsa_group_segment_fixed_size 0
  .amdhsa_kernarg_size 64
  .amdhsa_user_sgpr_count 2
  .amdhsa_user_sgpr_kernarg_segment_ptr 1
  .amdhsa_system_sgpr_workgroup_id_x 1
.end_amdhsa_kernel
.text
'''
def start(name):
    return f".globl {name}\n.p2align 8\n.type {name},@function\n{name}:\n"
def srd(d, b, size):
    return [f"s_mov_b32 s{d}, s{b}", f"s_and_b32 s{d+1}, s{b+1}, 0xffff", f"s_mov_b32 s{d+2}, {size}", f"s_mov_b32 s{d+3}, 0x20000"]

QOFF = 0
OOFF = 8<<20

def gemm(name, a_slot, a_off, a_size, lda, b_slot, b_size, ldb, c_slot, c_off, c_size, ldc, K, ntn, ntiles):
    L = []; A = L.append
    A(f"s_cmp_ge_u32 s2, {ntiles}"); A(f"s_cbranch_scc1 {name}_end")
    A(f"s_load_dwordx2 s[4:5], s[0:1], {a_slot*8}"); A(f"s_load_dwordx2 s[6:7], s[0:1], {b_slot*8}"); A(f"s_load_dwordx2 s[8:9], s[0:1], {c_slot*8}")
    magic = (2**32 + ntn - 1)//ntn
    A(f"s_mov_b32 s10, {magic}"); A("s_mul_hi_u32 s11, s2, s10"); A(f"s_mul_i32 s10, s11, {ntn}"); A("s_sub_u32 s10, s2, s10")
    A("s_waitcnt lgkmcnt(0)")
    A(f"s_add_u32 s4, s4, {a_off}"); A("s_addc_u32 s5, s5, 0")
    A(f"s_add_u32 s8, s8, {c_off}"); A("s_addc_u32 s9, s9, 0")
    L += srd(12, 4, a_size) + srd(16, 6, b_size) + srd(20, 8, c_size)
    A("v_and_b32 v1, 31, v0"); A("v_lshrrev_b32 v2, 5, v0")
    A("s_lshl_b32 s24, s11, 5"); A("v_add_u32 v3, s24, v1"); A(f"s_mov_b32 s25, {lda}"); A("v_mul_lo_u32 v3, v3, s25"); A("v_lshlrev_b32 v4, 4, v2"); A("v_add_u32 v3, v3, v4")
    A("s_lshl_b32 s26, s10, 5"); A("v_add_u32 v5, s26, v1"); A("v_lshlrev_b32 v5, 1, v5"); A(f"s_mov_b32 s25, {ldb*8}"); A("v_mul_lo_u32 v6, v2, s25"); A("v_add_u32 v5, v5, v6")
    for i in range(16): A(f"v_mov_b32 v{16+i}, 0")
    A("s_mov_b32 s27, 0"); A("s_mov_b32 s28, 0"); A("s_mov_b32 s29, 0")
    A(f"{name}_loop:")
    A("buffer_load_dwordx4 v[8:11], v3, s[12:15], s28 offen")
    for j in range(8):
        A(f"s_add_u32 s30, s29, {j*ldb}")
        A(f"buffer_load_ushort v{32+j}, v5, s[16:19], s30 offen")
    A("s_waitcnt vmcnt(0)")
    for j in range(4): A(f"v_lshl_or_b32 v{12+j}, v{33+2*j}, 16, v{32+2*j}")
    A("s_nop 1")
    A("v_mfma_f32_32x32x16_bf16 v[16:31], v[8:11], v[12:15], v[16:31]")
    A("s_add_u32 s28, s28, 32"); A(f"s_add_u32 s29, s29, {16*ldb}")
    A("s_add_u32 s27, s27, 1"); A(f"s_cmp_lt_u32 s27, {K//16}"); A("s_nop 7"); A(f"s_cbranch_scc1 {name}_loop")
    A("s_nop 15")
    A("v_lshlrev_b32 v4, 2, v2"); A("v_add_u32 v4, s24, v4"); A(f"s_mov_b32 s25, {ldc}"); A("v_mul_lo_u32 v4, v4, s25")
    A("v_add_u32 v6, s26, v1"); A("v_lshlrev_b32 v6, 1, v6"); A("v_add_u32 v4, v4, v6")
    for i in range(16):
        A(f"v_cvt_pk_bf16_f32 v{32+i}, v{16+i}, v{16+i}")
    for i in range(16):
        A(f"s_mov_b32 s30, {((i&3)+8*(i>>2))*ldc}")
        A(f"buffer_store_short v{32+i}, v4, s[20:23], s30 offen")
    A(f"{name}_end:"); A("s_endpgm")
    return start(name) + "\n".join(L) + "\n" + kd(name, 48)

def attn(name):
    L = []; A = L.append
    A("s_cmp_ge_u32 s2, 512"); A(f"s_cbranch_scc1 {name}_end")
    A("s_load_dwordx4 s[4:7], s[0:1], 8"); A("s_load_dwordx2 s[8:9], s[0:1], 56")
    A("s_lshr_b32 s10, s2, 6"); A("s_lshr_b32 s11, s2, 2"); A("s_and_b32 s11, s11, 15"); A("s_and_b32 s3, s2, 3")
    A("s_lshr_b32 s24, s11, 1"); A("s_lshl_b32 s25, s10, 3"); A("s_add_u32 s24, s24, s25"); A("s_lshl_b32 s24, s24, 19")
    A("s_waitcnt lgkmcnt(0)")
    A("s_add_u32 s4, s4, s24"); A("s_addc_u32 s5, s5, 0"); A("s_add_u32 s6, s6, s24"); A("s_addc_u32 s7, s7, 0")
    L += srd(12, 4, 1<<19) + srd(16, 6, 1<<19) + srd(20, 8, 16<<20)
    A("v_and_b32 v1, 31, v0"); A("v_lshrrev_b32 v2, 5, v0")
    A("s_lshl_b32 s25, s10, 7"); A("s_lshl_b32 s26, s3, 5"); A("s_add_u32 s25, s25, s26"); A("v_add_u32 v3, s25, v1"); A("v_lshlrev_b32 v3, 13, v3")
    A("s_lshl_b32 s26, s11, 9"); A("v_add_u32 v3, s26, v3")
    A("v_lshlrev_b32 v4, 4, v2"); A("v_add_u32 v4, v3, v4")
    for j in range(16): A(f"buffer_load_dwordx4 v[{64+4*j}:{67+4*j}], v4, s[20:23], 0 offen offset:{j*32}")
    A("v_lshlrev_b32 v5, 9, v1"); A("v_lshlrev_b32 v6, 4, v2"); A("v_add_u32 v5, v5, v6")
    A("v_lshlrev_b32 v6, 11, v2"); A("v_lshlrev_b32 v7, 1, v1"); A("v_add_u32 v6, v6, v7")
    for i in range(128): A(f"v_mov_b32 v{128+i}, 0")
    A("v_mov_b32 v8, 0xff800000")
    A("v_mov_b32 v9, 0")
    A("s_mov_b32 s27, 0"); A("s_mov_b32 s28, 0")
    A("s_mov_b32 s31, 0x3db8aa3b")
    A(f"{name}_loop:")
    for i in range(16): A(f"v_mov_b32 v{16+i}, 0")
    for j in range(16):
        A(f"buffer_load_dwordx4 v[32:35], v5, s[12:15], s28 offen offset:{j*32}")
        A("s_waitcnt vmcnt(0)")
        A(f"v_mfma_f32_32x32x16_bf16 v[16:31], v[32:35], v[{64+4*j}:{67+4*j}], v[16:31]")
        A("s_nop 7")
    A("s_nop 15")
    A("v_mov_b32 v10, v8")
    for i in range(16): A(f"v_max_f32 v10, v10, v{16+i}")
    A("v_mov_b32 v11, v10"); A("s_nop 1"); A("v_permlane32_swap_b32 v10, v11"); A("s_nop 1"); A("v_max_f32 v10, v10, v11")
    A("v_sub_f32 v11, v8, v10"); A("v_mul_f32 v11, s31, v11"); A("v_exp_f32 v11, v11"); A("s_nop 1")
    A("v_mov_b32 v8, v10"); A("v_mul_f32 v9, v9, v11")
    for i in range(16):
        A(f"v_sub_f32 v{16+i}, v{16+i}, v8"); A(f"v_mul_f32 v{16+i}, s31, v{16+i}"); A(f"v_exp_f32 v{16+i}, v{16+i}"); A("s_nop 0"); A(f"v_add_f32 v9, v9, v{16+i}")
    for i in range(8): A(f"v_cvt_pk_bf16_f32 v{40+i}, v{16+2*i}, v{17+2*i}")
    for i in range(128): A(f"v_mul_f32 v{128+i}, v{128+i}, v11")
    for kk in range(2):
        for t in range(8):
            for j in range(8):
                key = kk*16 + (j&3) + 8*(j>>2)
                A(f"s_add_u32 s30, s28, {key*512 + t*64}")
                A(f"buffer_load_ushort v{48+j}, v6, s[16:19], s30 offen")
            A("s_waitcnt vmcnt(0)")
            for j in range(4): A(f"v_lshl_or_b32 v{32+j}, v{49+2*j}, 16, v{48+2*j}")
            A("s_nop 1")
            A(f"v_mfma_f32_32x32x16_bf16 v[{128+16*t}:{143+16*t}], v[32:35], v[{40+4*kk}:{43+4*kk}], v[{128+16*t}:{143+16*t}]")
            A("s_nop 7")
    A("s_nop 15")
    A("s_add_u32 s28, s28, 16384"); A("s_add_u32 s27, s27, 1"); A("s_cmp_lt_u32 s27, 32"); A(f"s_cbranch_scc1 {name}_loop")
    A("v_mov_b32 v11, v9"); A("s_nop 1"); A("v_permlane32_swap_b32 v9, v11"); A("s_nop 1"); A("v_add_f32 v9, v9, v11"); A("v_rcp_f32 v9, v9"); A("s_nop 1")
    for i in range(128): A(f"v_mul_f32 v{128+i}, v{128+i}, v9")
    A("v_lshlrev_b32 v4, 3, v2"); A("v_add_u32 v4, v3, v4"); A(f"s_mov_b32 s30, {OOFF}")
    for t in range(8):
        for g in range(4):
            r = 128+16*t+4*g
            A(f"v_cvt_pk_bf16_f32 v{r}, v{r}, v{r+1}"); A(f"v_cvt_pk_bf16_f32 v{r+1}, v{r+2}, v{r+3}")
            A(f"buffer_store_dwordx2 v[{r}:{r+1}], v4, s[20:23], s30 offen offset:{(t*32+8*g)*2}")
    A(f"{name}_end:"); A("s_endpgm")
    return start(name) + "\n".join(L) + "\n" + kd(name, 256)

def probe(name, mode, nt):
    import gen_stream2
    s = gen_stream2.gen(waves=4, depth=4, mode=mode, nt=nt, supert=(1 if mode == "share" else 0))
    lines = s.split("\n")
    i0 = [i for i, l in enumerate(lines) if l.endswith("_kernel:")][0]
    i1 = [i for i, l in enumerate(lines) if l.startswith("s_endpgm")][0]
    body = lines[i0+1:i1+1]
    body = [l.replace("s_lshl_b32 s3, s2, 5", "s_lshl_b32 s3, s2, 5\ns_add_u32 s3, s3, 0x2000000") for l in body]
    if AMP:
        i = [k for k, l in enumerate(body) if l.startswith("s_sub_u32 s42, s42, s40")][0]
        amp = ["s_sub_u32 s50, s22, s20", "s_mul_i32 s50, s50, 10", "s_add_u32 s50, s50, s22", "s_mov_b32 s53, 0",
               "L_spin:", "s_memrealtime s[54:55]", "s_waitcnt lgkmcnt(0)", "s_add_u32 s53, s53, 1", "s_cmp_gt_u32 s53, 2000000", "s_cbranch_scc1 L_spun",
               "s_sub_u32 s56, s54, s50", "s_cmp_lt_i32 s56, 0", "s_cbranch_scc1 L_spin", "L_spun:"]
        body = body[:i] + amp + body[i:]
    return start(name) + "\n".join(body) + "\n" + kd(name, 16)
AMP = True
def full(pr=None):
    hdr = []
    if pr: hdr.append("; @launch kernel=probe_kernel grid=(256,1,1) block=(256,1,1) lds=131072")
    hdr.append("; @launch kernel=qproj_kernel grid=(4096,1,1) block=(64,1,1) lds=0")
    hdr.append("; @launch kernel=attn_kernel grid=(512,1,1) block=(64,1,1) lds=0")
    hdr.append("; @launch kernel=oproj_kernel grid=(448,1,1) block=(64,1,1) lds=0")
    s = "\n".join(hdr) + "\n" + HEAD
    if pr: s += probe("probe_kernel", *pr)
    s += gemm("qproj_kernel", 0, 0, 1024*896, 896, 3, 448*8192, 8192, 7, QOFF, 8<<20, 8192, 448, 128, 4096)
    s += attn("attn_kernel")
    s += gemm("oproj_kernel", 7, OOFF, 8<<20, 8192, 4, 4096*896, 896, 5, 0, 1024*896, 896, 4096, 14, 448)
    return s
if __name__ == "__main__":
    open("simple0.s", "w").write(full())
    open("simple_qd.s", "w").write(full(("quarter", "")))
    open("simple_qnt.s", "w").write(full(("quarter", "nt")))
    open("simple_sd.s", "w").write(full(("share", "")))
    open("simple_snt.s", "w").write(full(("share", "nt")))
```

```python
import gen_simple as g, re
src = open("gen_icache.py").read()
src = src[:src.index("cfgs = []")]
src = src.replace('A("s_mov_b32 s30, 0"); A("L_loop:")', 'A("s_mov_b32 s30, 0"); A("s_nop 0"); A("L_loop:")')
ns = {}; exec(src, ns)
def probe(name, kind, n):
    s = ns["gen"](kind=kind, n=n, waves=4)
    lines = s.split("\n")
    i0 = [i for i, l in enumerate(lines) if l.endswith("_kernel:")][0]
    i1 = [i for i, l in enumerate(lines) if l.startswith("s_endpgm")][0]
    body = lines[i0+1:i1+1]
    body = [l.replace("s_lshl_b32 s3, s2, 5", "s_lshl_b32 s3, s2, 5\ns_add_u32 s3, s3, 0x2000000") for l in body]
    i = [k for k, l in enumerate(body) if l.startswith("s_sub_u32 s42, s42, s40")][0]
    amp = ["s_sub_u32 s50, s22, s20", "s_mul_i32 s50, s50, 10", "s_add_u32 s50, s50, s22", "s_mov_b32 s53, 0",
           "L_spin:", "s_memrealtime s[54:55]", "s_waitcnt lgkmcnt(0)", "s_add_u32 s53, s53, 1", "s_cmp_gt_u32 s53, 2000000", "s_cbranch_scc1 L_spun",
           "s_sub_u32 s56, s54, s50", "s_cmp_lt_i32 s56, 0", "s_cbranch_scc1 L_spin", "L_spun:"]
    body = body[:i] + amp + body[i:]
    return g.start(name) + "\n".join(body) + "\n" + g.kd(name, 64)
g.probe = probe
open("simple_il.s", "w").write(g.full(("line", 4096)))
open("simple_io.s", "w").write(g.full(("loop", 4096)))
open("simple_i0.s", "w").write(g.full(("line", 128)))
```

```python
import re

def regs_of(tok):
    tok = tok.strip()
    tok = tok.lstrip('-')
    if tok.startswith('abs') or tok.startswith('|'):
        tok = tok.replace('abs(', '').replace(')', '').replace('|', '')
    m = re.fullmatch(r'([vs])(\d+)', tok)
    if m: return {(m.group(1), int(m.group(2)))}
    m = re.fullmatch(r'([vs])\[(\d+):(\d+)\]', tok)
    if m: return {(m.group(1), i) for i in range(int(m.group(2)), int(m.group(3)) + 1)}
    if tok == 'vcc': return {('s', 106), ('s', 107)}
    if tok == 'm0': return {('s', 124)}
    if tok == 'exec': return {('s', 126), ('s', 127)}
    return set()

TRANS = ('v_exp_f32', 'v_rcp_f32', 'v_log_f32', 'v_rsq_f32', 'v_sqrt_f32')

def parse(ins):
    s = ins.split(';')[0].strip()
    if not s or s.endswith(':') or s.startswith('.'): return None
    parts = s.split(None, 1)
    mn = parts[0]
    ops = []
    if len(parts) > 1:
        ops = [o.strip() for o in re.split(r',(?![^\[]*\])', parts[1])]
        new = []
        for o in ops:
            new.append(o.split()[0] if o.split() else o)
        ops = new
    R = lambda i: regs_of(ops[i]) if i < len(ops) else set()
    allr = lambda a: set().union(*[R(i) for i in range(a, len(ops))]) if len(ops) > a else set()
    if mn.startswith('ds_write') or mn.startswith('buffer_store') or mn.startswith('global_store') or mn.startswith('global_atomic') or mn.startswith('buffer_atomic'):
        return mn, set(), allr(0)
    if mn.startswith('buffer_load') and ' lds' in s:
        return mn, set(), allr(0) | {('s', 124)}
    if mn.startswith('v_permlane32_swap') or mn.startswith('v_permlane16_swap'):
        return mn, R(0) | R(1), R(0) | R(1)
    if mn.startswith('v_fmac') or mn.startswith('v_pk_fmac'):
        return mn, R(0), allr(0)
    if mn.startswith('s_cmp') or mn.startswith('s_cbranch') or mn.startswith('s_branch') or mn in ('s_barrier', 's_waitcnt', 's_nop', 's_endpgm', 's_setprio', 's_sleep'):
        return mn, set(), allr(0)
    if mn.startswith('v_cndmask') and len(ops) == 3:
        return mn, R(0), allr(1) | regs_of('vcc')
    return mn, R(0), allr(1)

def is_valu(mn): return mn.startswith('v_') and not mn.startswith('v_mfma')
def is_mfma(mn): return mn.startswith('v_mfma')
def is_mem(mn): return mn.startswith(('ds_', 'buffer_', 'global_'))

def check_hazards(lines, name=""):
    hist = []
    pos = 0
    errs = []
    for ins in lines:
        p = parse(ins)
        if p is None: continue
        mn, W, Rd = p
        for (q, pmn, pW, pR, ptxt) in reversed(hist):
            d = pos - q
            if d > 20: break
            need = 0
            vW = {r for r in pW if r[0] == 'v'}
            if is_mfma(pmn):
                passes = 8 if '32x32x16' in pmn else 4
                big = {8: 12, 4: 8}[passes]
                if is_mfma(mn):
                    ops = [o.strip() for o in re.split(r',(?![^\[]*\])', ins.split(';')[0].split(None, 1)[1])]
                    A = regs_of(ops[1]) | regs_of(ops[2]); C = regs_of(ops[3]); D = regs_of(ops[0])
                    if vW & A: need = max(need, big)
                    if vW & C and C != vW: need = max(need, {8: 10, 4: 6}[passes])
                    if vW & D and not (vW & C): need = max(need, big)
                elif is_valu(mn) or is_mem(mn):
                    if vW & (Rd | W): need = max(need, big)
                    pops = [o.strip() for o in re.split(r',(?![^\[]*\])', ptxt.split(';')[0].split(None, 1)[1])]
                    if is_valu(mn) and regs_of(pops[3]) & W: need = max(need, {8: 7, 4: 3}[passes])
            elif is_valu(pmn):
                if is_mfma(mn) and vW & Rd: need = max(need, 2)
                if pmn.startswith(TRANS) and is_valu(mn) and not mn.startswith(TRANS) and vW & Rd: need = max(need, 1)
                if mn.startswith('v_permlane') and vW & Rd: need = max(need, 2)
                if mn.startswith(('v_readfirstlane', 'v_readlane')) and vW & Rd: need = max(need, 1)
                sW = {r for r in pW if r[0] == 's'}
                if sW:
                    if is_mem(mn) and sW & Rd: need = max(need, 5)
                    if is_valu(mn) and sW & Rd: need = max(need, 2)
            elif pmn.startswith(('buffer_store_dwordx4', 'global_store_dwordx4', 'buffer_store_dwordx3')):
                data = regs_of([o.strip() for o in re.split(r',(?![^\[]*\])', ptxt.split(None, 1)[1])][0 if pmn.startswith('buffer') else 1])
                if data & W: need = max(need, 2)
            elif pmn.startswith('s_') and ('s', 124) in pW:
                if mn.startswith('buffer_load') and ('s', 124) in Rd: need = max(need, 1)
            if d < need:
                errs.append(f"{name}: hazard need {need} have {d}: [{ptxt.strip()}] -> [{ins.strip()}]")
        hist.append((pos + 1 if True else pos, mn, W, Rd, ins))
        if mn == 's_nop':
            n = int(ins.split()[1], 0) + 1
            pos += n
            hist[-1] = (pos, mn, W, Rd, ins)
        else:
            pos += 1
    return errs

class Em:
    def __init__(self):
        self.L = []
        self.ds = []
    def raw(self, s): self.L.append(s)
    def __call__(self, s):
        p = parse(s)
        if p is not None:
            mn, W, Rd = p
            touched = W | Rd
            last = -1
            for i, d in enumerate(self.ds):
                if d & touched: last = i
            if last >= 0:
                n = len(self.ds) - 1 - last
                n = min(n, 15)
                self.L.append(f"s_waitcnt lgkmcnt({n})")
                self.ds = self.ds[len(self.ds) - n:] if n else []
            if mn.startswith('ds_'):
                self.ds.append(set(W))
        self.L.append(s)
    def drain(self):
        if self.ds:
            self.L.append("s_waitcnt lgkmcnt(0)")
            self.ds = []
    def label(self, n): self.L.append(f"{n}:")
```

```python
import sys, argparse
from emit import Em, check_hazards

NAME = "standalone__gqa_block_cached__near_ridge"
S = 32768
LAG = (0, 2, 1, 1)
TS_OFF = 16 << 20
PART_BYTES = 16 * 56 * 16 * 1024

def slotK(k): return 4 if k == 0 else (2 * k + 3) % 5
def slotV(v): return 0 if v == 15 else (2 * v + 1) % 5
def slotWQ(i): return 1 if i == 0 else (i + 2) % 5
SLOT_WO = [1, 2, 0, 3, 4, 1, 2]
OXA, OXB = 3, 4

def loader_schedule():
    pre = [("X", 0, 0), ("WQ", 0, 1), ("X", 1, 2), ("WQ", 1, 3), ("WQ", 2, 4)]
    ph = []
    ph.append(([("X", 0), ("WQ", 0), ("X", 1)], []))
    ph.append(([("WQ", 1)], [("WQ", 3, slotWQ(3)), ("WQ", 4, slotWQ(4)), ("WQ", 5, slotWQ(5))]))
    ph.append(([("WQ", 2)], [("WQ", 6, slotWQ(6))]))
    ph.append(([("WQ", 3)], [("K", 0, slotK(0))]))
    ph.append(([("WQ", 4)], [("K", 1, slotK(1))]))
    ph.append(([("WQ", 5)], [("V", 0, slotV(0))]))
    ph.append(([("WQ", 6)], [("K", 2, slotK(2))]))
    ph.append(([], []))
    ph.append(([("K", 0)], []))
    for t in range(16):
        need = [("V", t)] + ([("K", t + 1)] if t < 15 else [])
        iss = []
        if t <= 12: iss = [("V", t + 1, slotV(t + 1)), ("K", t + 3, slotK(t + 3))]
        elif t == 13: iss = [("V", 14, slotV(14)), ("V", 15, slotV(15))]
        elif t == 14: iss = [("WO", 0, SLOT_WO[0]), ("WO", 1, SLOT_WO[1])]
        ph.append((need, iss))
    ph.append(([], [("WO", 2, SLOT_WO[2])]))
    ph.append(([], []))
    ph.append(([("WO", 0)], []))
    ph.append(([("WO", 1)], [("WO", 3, SLOT_WO[3]), ("WO", 4, SLOT_WO[4]), ("WO", 5, SLOT_WO[5])]))
    ph.append(([("WO", 2)], [("WO", 6, SLOT_WO[6])]))
    for i in range(3, 7): ph.append(([("WO", i)], []))
    return pre, ph

class G:
    def __init__(self, ts=False):
        self.ts = ts
        self.segs = []

    def stamp(self, e, i):
        if self.ts: e.raw(f"s_memrealtime s[{70+2*i}:{71+2*i}]")
    def stamp_store(self, e, nst, which):
        if not self.ts: return
        e.raw("s_waitcnt lgkmcnt(0)")
        for i in range(2 * nst): e.raw(f"v_mov_b32 v{100+i}, s{70+i}")
        e.raw(f"s_lshl_b32 s3, s2, 8"); e.raw(f"s_add_u32 s3, s3, {TS_OFF + which*128}")
        e.raw("v_mov_b32 v99, s3")
        for i in range(0, 2 * nst, 4):
            e.raw(f"global_store_dwordx4 v99, v[{100+i}:{103+i}], s[18:19] offset:{4*i}")

    def prologue(self, e):
        e.raw("s_cmp_ge_u32 s2, 256"); e.raw("s_cbranch_scc1 L_end")
        e.raw("s_load_dwordx16 s[4:19], s[0:1], 0")
        if self.ts:
            e.raw("s_memrealtime s[70:71]")
        e.raw("v_lshrrev_b32 v1, 6, v0")
        e.raw("s_and_b32 s20, s2, 7")
        e.raw("v_readfirstlane_b32 s26, v1")
        e.raw("s_lshr_b32 s21, s2, 5")
        e.raw("s_bfe_u32 s22, s2, 0x20003")
        e.raw("s_lshr_b32 s28, s22, 1")
        e.raw("s_lshl_b32 s23, s20, 1"); e.raw("s_add_u32 s23, s23, s28")
        e.raw("s_and_b32 s24, s22, 1")
        e.raw("s_lshl_b32 s25, s21, 1"); e.raw("s_add_u32 s25, s25, s24")
        e.raw("s_mul_i32 s27, s25, 7"); e.raw("s_lshr_b32 s27, s27, 4")
        e.raw("v_and_b32 v0, 63, v0")
        e.raw("s_cmp_lt_u32 s26, 4"); e.raw("s_cbranch_scc1 L_compute")

    def code_prefetch(self, e, lo, hi):
        e.raw("s_getpc_b64 s[64:65]")
        lab = f"L_pc_{lo}"
        e.label(lab)
        e.raw(f"s_add_u32 s64, s64, {lo}-{lab}"); e.raw("s_addc_u32 s65, s65, " + ("0" if lo != "L_start" else "-1"))
        e.raw("s_lshr_b32 s66, s2, 3"); e.raw("s_lshl_b32 s66, s66, 2"); e.raw("s_add_u32 s66, s66, s29"); e.raw("s_lshl_b32 s66, s66, 8")
        e.raw(f"s_min_u32 s66, s66, {hi}-{lo}-256")
        e.raw("s_add_u32 s64, s64, s66"); e.raw("s_addc_u32 s65, s65, 0")
        for i in range(4): e.raw(f"s_load_dword s67, s[64:65], {64*i}")

    def loader(self, e):
        VX, VWQ, VK, VV, VWO = 8, 16, 20, 28, 30
        e.raw("s_setprio 2")
        e.raw("s_sub_u32 s29, s26, 4")
        e.raw("s_lshl_b32 s52, s29, 13")
        e.raw("v_lshrrev_b32 v1, 5, v0")
        e.raw("v_and_b32 v2, 31, v0")
        e.raw("s_lshl_b32 s53, s29, 3")
        e.raw("s_and_b32 s54, s53, 15")
        e.raw("s_mul_i32 s55, s53, 896")
        e.raw("v_xor_b32 v3, s54, v0")
        for i in range(8):
            e.raw(f"v_xor_b32 v4, {i}, v3"); e.raw("v_min_u32 v4, 55, v4")
            e.raw(f"s_add_u32 s60, s55, {i*896 - (i&3)*1024 + 512}")
            e.raw(f"v_lshl_add_u32 v{VX+i}, v4, 4, s60")
        e.raw("v_lshlrev_b32 v3, 2, v1"); e.raw("v_xor_b32 v3, v3, v2"); e.raw("v_lshlrev_b32 v5, 4, v3")
        e.raw("v_xor_b32 v6, 0x80, v5")
        e.raw("s_lshl_b32 s55, s29, 17")
        e.raw("v_lshl_add_u32 v7, v1, 13, s55")
        for i in range(4):
            e.raw(f"v_add_u32 v4, {2*i*8192 - i*1024}, v7"); e.raw(f"v_add_u32 v{VWQ+i}, v4, v{5+(i&1)}")
        e.raw("s_waitcnt lgkmcnt(0)")
        e.raw(f"s_mul_i32 s30, s25, {64*896}")
        e.raw("s_add_u32 s32, s4, s30"); e.raw("s_addc_u32 s33, s5, 0"); e.raw("s_sub_u32 s32, s32, 512"); e.raw("s_subb_u32 s33, s33, 0")
        e.raw(f"s_mov_b32 s34, {64*896+512}"); e.raw("s_mov_b32 s35, 0x20000")
        e.raw("s_lshl_b32 s30, s23, 9")
        e.raw("s_add_u32 s44, s10, s30"); e.raw("s_addc_u32 s45, s11, 0"); e.raw(f"s_sub_u32 s46, {448*8192}, s30"); e.raw("s_mov_b32 s47, 0x20000")
        e.raw("s_lshl_b32 s62, s27, 19")
        e.raw(f"s_mul_i32 s31, s28, {32*896}")
        def rest_setup():
            e.raw("v_lshl_add_u32 v7, v1, 9, s52")
            e.raw("v_xor_b32 v3, v1, v2")
            for i in range(8):
                e.raw(f"v_xor_b32 v4, {2*i}, v3"); e.raw(f"v_lshl_add_u32 v4, v4, 4, v7")
                if i >= 4: e.raw(f"v_add_u32 v{VK+i}, 0x1000, v4")
                else: e.raw(f"v_mov_b32 v{VK+i}, v4")
            e.raw(f"v_add_u32 v{VV}, v7, v5"); e.raw(f"v_add_u32 v{VV+1}, v7, v6")
            e.raw("v_lshrrev_b32 v3, 3, v0"); e.raw("v_and_b32 v4, 7, v0")
            e.raw("v_lshlrev_b32 v5, 1, v3"); e.raw("v_and_b32 v5, 4, v5"); e.raw("v_xor_b32 v4, v4, v5")
            e.raw("v_mul_u32_u24 v3, 896, v3"); e.raw("v_lshl_add_u32 v3, v4, 4, v3")
            e.raw(f"s_mul_i32 s55, s29, {64*896}")
            for i in range(4):
                e.raw(f"s_add_u32 s60, s55, {8*i*896 - i*1024}"); e.raw(f"v_add_u32 v{VWO+i}, s60, v3")
            e.raw("s_lshl_b32 s30, s21, 3"); e.raw("s_add_u32 s30, s30, s20"); e.raw("s_lshl_b32 s30, s30, 19")
            e.raw("s_add_u32 s36, s6, s30"); e.raw("s_addc_u32 s37, s7, 0"); e.raw("s_mov_b32 s38, 0x80000"); e.raw("s_mov_b32 s39, 0x20000")
            e.raw("s_add_u32 s40, s8, s30"); e.raw("s_addc_u32 s41, s9, 0"); e.raw("s_mov_b32 s42, 0x80000"); e.raw("s_mov_b32 s43, 0x20000")
            e.raw(f"s_mul_i32 s30, s23, {256*896}")
            e.raw("s_add_u32 s48, s12, s30"); e.raw("s_addc_u32 s49, s13, 0"); e.raw(f"s_mov_b32 s50, {256*896}"); e.raw("s_mov_b32 s51, 0x20000")
            e.raw("s_lshl_b32 s63, s27, 7")
            packed = sum(LAG[u] << (4 * u) for u in range(4))
            for r in range(4):
                e.raw(f"s_sub_u32 s30, {r+4}, s22"); e.raw("s_and_b32 s30, s30, 3"); e.raw("s_lshl_b32 s30, s30, 2")
                e.raw(f"s_lshr_b32 s30, {packed}, s30"); e.raw("s_and_b32 s30, s30, 15"); e.raw("s_lshl_b32 s30, s30, 15")
                e.raw(f"s_sub_u32 s{56+r}, 0, s30")
        issued = []
        def issue(t, i, slot):
            e.raw(f"s_add_u32 m0, s52, {slot*S}")
            if t == "X":
                if i == 0: e.raw("s_mov_b32 s60, s31")
                else: e.raw(f"s_sub_u32 s60, {32*896}, s31")
                regs = [VX + k for k in range(8)]; srd = 32; step = 0
            elif t == "WQ":
                e.raw("s_mov_b32 s60, s62"); e.raw("s_add_u32 s62, s62, 0x80000"); e.raw(f"s_cmp_ge_u32 s62, {7<<19}"); e.raw("s_cselect_b32 s62, 0, s62")
                regs = [VWQ + (k & 3) for k in range(8)]; srd = 44; step = 8 * 8192
            elif t in ("K", "V"):
                e.raw(f"s_add_u32 s60, s{56+(i&3)}, {i*S}"); e.raw("s_and_b32 s60, s60, 0x7ffff")
                if t == "K": regs = [VK + k for k in range(8)]; srd = 36; step = 0
                else: regs = [VV + (k & 1) for k in range(8)]; srd = 40; step = 4096
            elif t == "WO":
                e.raw("s_mov_b32 s60, s63"); e.raw("s_add_u32 s63, s63, 128"); e.raw("s_cmp_ge_u32 s63, 896"); e.raw("s_cselect_b32 s63, 0, s63")
                regs = [VWO + (k & 3) for k in range(8)]; srd = 48; step = 32 * 896
            so = "s60"
            for k in range(8):
                if k == 4:
                    e.raw("s_add_u32 m0, m0, 0x1000")
                    if step: e.raw(f"s_add_u32 s61, s60, {step}"); so = "s61"
                    else: e.raw("s_nop 0")
                e.raw(f"buffer_load_dwordx4 v{regs[k]}, s[{srd}:{srd+3}], {so} offen offset:{(k&3)*1024} lds")
            issued.append((t, i))
        pre, ph = loader_schedule()
        for n, u in enumerate(pre):
            issue(*u)
            if n == 1: self.code_prefetch(e, "L_start", "L_code_end")
        rest_setup()
        self.stamp(e, 1)
        waited = -1
        for bi, (need, iss) in enumerate(ph):
            if need:
                last = max(issued.index(u) for u in need)
                if last > waited:
                    e.raw(f"s_waitcnt vmcnt({8*(len(issued)-1-last)})"); waited = last
            e.raw("s_barrier")
            if bi == 0: self.stamp(e, 2)
            if bi == 9: self.stamp(e, 3)
            if bi == 24: self.stamp(e, 4)
            for u in iss: issue(*u)
            if bi == 9 + 11: self.code_prefetch(e, "L_tail", "L_code_end")
        self.stamp(e, 5)
        if self.ts:
            e.raw("s_cmp_lg_u32 s26, 4"); e.raw("s_cbranch_scc1 L_end")
            self.stamp_store(e, 8, 1)
        e.raw("s_endpgm")

    def compute(self, e):
        O, Q, S0, S1, FR = 0, 128, 192, 208, 224
        vK, vV, negm, vl, mx, t0, t1, vWO = 248, 249, 250, 251, 252, 253, 254, 255
        vX, vWQ, lane16 = 192, 193, 194
        fr = lambda b: FR + 4 * b
        v4 = lambda r: f"v[{r}:{r+3}]"
        v16 = lambda r: f"v[{r}:{r+15}]"
        MF = "v_mfma_f32_32x32x16_bf16"
        e.label("L_compute")
        e.raw("s_and_b32 s29, s26, 1")
        e.raw("s_lshr_b32 s30, s26, 1")
        e("v_and_b32 v200, 31, v0"); e("v_lshrrev_b32 v201, 5, v0"); e("v_bfe_u32 v202, v0, 2, 2"); e("v_and_b32 v203, 3, v0"); e("v_bfe_u32 v204, v0, 4, 1")
        e(f"v_lshlrev_b32 v{lane16}, 4, v0")
        e("v_and_b32 v205, 15, v200"); e("v_xor_b32 v205, v205, v201"); e("v_lshlrev_b32 v205, 4, v205")
        e.raw("s_xor_b32 s31, s29, s28"); e.raw("s_lshl_b32 s31, s31, 16")
        e(f"v_lshl_add_u32 v{vX}, v200, 10, v205"); e(f"v_add_u32 v{vX}, s31, v{vX}")
        e.raw("s_lshl_b32 s31, s30, 14"); e.raw(f"s_add_u32 s36, s31, {slotK(0)*S}")
        e(f"v_lshl_add_u32 v{vK}, v200, 9, v205"); e(f"v_add_u32 v{vK}, s36, v{vK}")
        e("v_and_b32 v206, 1, v203"); e("v_lshrrev_b32 v207, 1, v203"); e("v_lshlrev_b32 v208, 2, v202")
        e("v_lshl_add_u32 v211, v204, 1, v206"); e("v_xor_b32 v209, v211, v208"); e("v_lshlrev_b32 v209, 4, v209"); e("v_lshl_add_u32 v209, v207, 3, v209")
        e("v_lshl_add_u32 v212, v204, 1, v207"); e("v_xor_b32 v210, v212, v208"); e("v_lshlrev_b32 v210, 4, v210"); e("v_lshl_add_u32 v210, v206, 3, v210")
        e.raw("s_lshl_b32 s37, s30, 8")
        e("v_lshl_add_u32 v213, v201, 3, v202"); e(f"v_lshl_add_u32 v{vWQ}, v213, 9, v209")
        e.raw(f"s_add_u32 s36, s37, {slotWQ(0)*S}"); e(f"v_add_u32 v{vWQ}, s36, v{vWQ}")
        e("v_lshl_add_u32 v213, v201, 2, v202"); e(f"v_lshl_add_u32 v{vV}, v213, 9, v210")
        e.raw("s_add_u32 s36, s37, s31"); e.raw(f"s_add_u32 s36, s36, {slotV(0)*S}"); e(f"v_add_u32 v{vV}, s36, v{vV}")
        e.raw("s_lshl_b32 s36, s30, 2")
        e("v_add_u32 v211, s36, v211"); e("v_lshlrev_b32 v214, 1, v202"); e("v_and_b32 v214, 4, v214"); e("v_xor_b32 v211, v211, v214")
        e("v_lshlrev_b32 v211, 4, v211"); e("v_lshl_add_u32 v211, v207, 3, v211"); e(f"v_lshl_add_u32 v{vWO}, v213, 7, v211")
        e.raw(f"s_add_u32 s36, s31, {SLOT_WO[0]*S}"); e(f"v_add_u32 v{vWO}, s36, v{vWO}")
        e.raw("s_mov_b32 s38, 0x3db8aa3b")
        e.raw("s_mov_b32 s39, 0x41000000")
        e.raw(f"s_mov_b32 s40, {2*S}"); e.raw(f"s_mov_b32 s41, {(-3*S) & 0xffffffff}")
        mK = sum(1 << t for t in range(15) if slotK(t + 2) < slotK(t + 1)) if True else 0
        mV = sum(1 << t for t in range(14) if slotV(t + 1) < slotV(t))
        e.raw(f"s_mov_b32 s42, {mK}"); e.raw(f"s_mov_b32 s43, {mV}")
        e.raw("s_lshl_b32 s44, s27, 7")
        e.raw("s_waitcnt lgkmcnt(0)")
        e.raw("s_mov_b32 s32, s18"); e.raw("s_mov_b32 s33, s19"); e.raw(f"s_mov_b32 s34, {PART_BYTES}"); e.raw("s_mov_b32 s35, 0x20000")
        e.raw("s_mul_i32 s45, s25, 56"); e.raw("s_lshl_b32 s46, s26, 1"); e.raw("s_add_u32 s45, s45, s46"); e.raw("s_lshl_b32 s45, s45, 14")
        e.raw("s_lshl_b32 s46, s23, 10"); e.raw("s_add_u32 s45, s45, s46")
        e.raw("s_lshl_b32 s46, s27, 17")

        var = {}
        def addr(reg, want):
            cur = var.get(reg, 0)
            if cur != want:
                e(f"v_xor_b32 v{reg}, {cur ^ want}, v{reg}")
                var[reg] = want

        def pipeline(items, cyc, cuts, first_limit, fill, pending=(), tail_pending=0, on_cut=None, after_pending=None):
            F = len(cyc)
            st = {"nr": 0, "lim": first_limit}
            def reads(upto):
                while st["nr"] < min(st["lim"], len(items)) and st["nr"] <= upto:
                    items[st["nr"]][0](cyc[st["nr"] % F]); st["nr"] += 1
            reads(F - 1 - len(pending))
            for k, p in enumerate(pending):
                p(); reads(F - len(pending) + k)
            if after_pending: after_pending()
            for i in range(len(items) - tail_pending):
                if i in cuts:
                    assert st["nr"] == st["lim"], (i, st)
                    e.drain(); e.raw("s_barrier")
                    if on_cut: on_cut(i)
                    st["lim"] = cuts[i]
                    reads(i + F - 1)
                items[i][1](cyc[i % F])
                reads(i + F)
                for f in fill.get(i, []): f()
            assert st["nr"] == len(items)

        XF = 64
        def xread(s, kk):
            def f():
                if kk == 0 and s > 0:
                    e.raw("s_add_u32 s44, s44, 128"); e.raw("s_cmp_ge_u32 s44, 896"); e.raw("s_cselect_b32 s44, 0, s44")
                e.raw(f"s_add_u32 s47, s44, {kk*32}")
                e(f"v_xor_b32 v195, s47, v{vX}")
                e(f"ds_read_b128 {v4(XF + 16*s + 4*kk)}, v195")
            return f
        items = []
        for s in range(7):
            for T in range(4):
                for kk in range(4):
                    def rd(b, s=s, T=T, kk=kk):
                        if T == 0 and kk == 0 and s > 0:
                            d = (slotWQ(s) - slotWQ(s - 1)) * S
                            e(f"v_add_u32 v{vWQ}, {d & 0xffffffff}, v{vWQ}")
                        addr(vWQ, T * 64)
                        e(f"ds_read_b64_tr_b16 v[{fr(b)}:{fr(b)+1}], v{vWQ} offset:{kk*8192}")
                        e(f"ds_read_b64_tr_b16 v[{fr(b)+2}:{fr(b)+3}], v{vWQ} offset:{kk*8192+2048}")
                    def mf(b, s=s, T=T, kk=kk):
                        c = "0" if (s == 0 and kk == 0) else v16(16 * T)
                        e(f"{MF} {v16(16*T)}, {v4(fr(b))}, {v4(XF+16*s+4*kk)}, {c}")
                    items.append((rd, mf))
        self.stamp(e, 1)
        e.raw("s_barrier")
        self.stamp(e, 2)
        for kk in range(4): xread(0, kk)()
        fill = {}
        xs = [(s, kk) for s in range(1, 7) for kk in range(4)]
        for n, (s, kk) in enumerate(xs): fill.setdefault(n // 2, []).append(xread(s, kk))
        cuts = {16 * s - 2: 16 * (s + 1) for s in range(1, 7)}
        cuts[110] = 112
        QP = 176
        def cvtT(T):
            base = (176 + 8 * T) if T < 2 else (208 + 8 * (T - 2))
            return [lambda i=i, base=base, T=T: e(f"v_cvt_pk_bf16_f32 v{base+i}, v{16*T+2*i}, v{16*T+2*i+1}") for i in range(8)]
        c0 = cvtT(0); c1 = cvtT(1)
        for i in range(8): fill.setdefault(103 + i // 2, []).append(c0[i])
        for i in range(8): fill.setdefault(107 + i // 2, []).append(c1[i])
        pipeline(items, [0, 1, 2, 3, 4, 5], cuts, 16, fill)
        e.raw("s_lshl_b32 s47, s29, 14"); e.raw(f"s_add_u32 s47, s47, {slotWQ(6)*S}"); e.raw("s_lshl_b32 s48, s30, 13"); e.raw("s_add_u32 s48, s48, s47")
        e(f"v_add_u32 v195, s48, v{lane16}")
        e(f"v_add_u32 v196, s47, v{lane16}")
        for T in range(2):
            for h in range(2): e(f"ds_write_b128 v195, {v4(176+8*T+4*h)} offset:{(2*T+h)*1024}")
        for f in cvtT(2): f()
        for h in range(2): e(f"ds_write_b128 v195, {v4(208+4*h)} offset:{(4+h)*1024}")
        for f in cvtT(3): f()
        for h in range(2): e(f"ds_write_b128 v195, {v4(216+4*h)} offset:{(6+h)*1024}")
        for i in range(64, 128): e(f"v_mov_b32 v{i}, 0")
        e.drain(); e.raw("s_barrier")
        self.stamp(e, 3)
        def kitems(Sd):
            its = []
            for n in range(16):
                ks = (n >> 1) + 8 * (n & 1)
                def rd(b, ks=ks):
                    addr(vK, (ks & 7) * 32)
                    e(f"ds_read_b128 {v4(fr(b))}, v{vK} offset:{(ks>>3)*256}")
                def mf(b, ks=ks, n=n):
                    e(f"{MF} {v16(Sd)}, {v4(fr(b))}, {v4(Q+4*ks)}, {'0' if n == 0 else v16(Sd)}")
                its.append((rd, mf))
            return its
        its = kitems(S0)
        e(f"v_mov_b32 v{t0}, v196")
        qorder = [(n >> 1) + 8 * (n & 1) for n in range(16)]
        for ks in qorder[:4]: e(f"ds_read_b128 {v4(Q+4*ks)}, v{t0} offset:{ks*1024}")
        fill = {}
        for n, ks in enumerate(qorder[4:]):
            fill.setdefault(n // 2, []).append(lambda ks=ks: e(f"ds_read_b128 {v4(Q+4*ks)}, v{t0} offset:{ks*1024}"))
        for i in range(64): fill.setdefault(i // 4, []).append(lambda i=i: e(f"v_mov_b32 v{i}, 0"))
        pipeline(its, [0, 1, 2, 3, 4, 5], {}, 16, fill)
        addr(vK, 0)
        e(f"v_add_u32 v{vK}, {((slotK(1)-slotK(0))*S) & 0xffffffff}, v{vK}")
        for i in range(8): e(f"v_mov_b32 v{fr(4)+i}, 0")
        for i in range(4): e(f"v_mov_b32 v{S1+4+i}, 0")
        e(f"v_mov_b32 v{vl}, 0")
        def maxtree(Sx):
            ops = [lambda: e(f"v_max3_f32 v{mx}, v{Sx}, v{Sx+1}, v{Sx+2}")]
            for i in range(3, 15, 2): ops.append(lambda i=i: e(f"v_max3_f32 v{mx}, v{mx}, v{Sx+i}, v{Sx+i+1}"))
            ops.append(lambda: e(f"v_max_f32 v{mx}, v{mx}, v{Sx+15}"))
            return ops
        for f in maxtree(S0): f()
        e(f"v_mov_b32 v{t0}, v{mx}"); e.raw("s_nop 1"); e(f"v_permlane32_swap_b32 v{mx}, v{t0}"); e.raw("s_nop 0")
        e(f"v_max_f32 v{mx}, v{mx}, v{t0}")
        e(f"v_mul_f32 v{negm}, s38, v{mx}"); e(f"v_sub_f32 v{negm}, 0, v{negm}")
        for i in range(16): e(f"v_fma_f32 v{S0+i}, v{S0+i}, s38, v{negm}")
        e(f"v_mov_b32 v{mx}, 0")
        e.raw("s_mov_b32 s49, 0")
        self.segs.append(("pre", list(e.L)))

        def vitems(Sp):
            its = []
            for kk in range(2):
                for tt in range(8):
                    tp = tt if kk == 0 else 7 - tt
                    def rd(b, kk=kk, tp=tp):
                        addr(vV, (tp & 3) * 64 + (tp >> 2) * 256)
                        e(f"ds_read_b64_tr_b16 v[{fr(b)}:{fr(b)+1}], v{vV} offset:{kk*8192}")
                        e(f"ds_read_b64_tr_b16 v[{fr(b)+2}:{fr(b)+3}], v{vV} offset:{kk*8192+4096}")
                    def mf(b, kk=kk, tp=tp):
                        e(f"{MF} {v16(O+16*tp)}, {v4(fr(b))}, {v4(Sp+4*kk)}, {v16(O+16*tp)}")
                    its.append((rd, mf))
            return its
        def softmax_ops(Sc):
            ex = [lambda i=i: e(f"v_exp_f32 v{Sc+i}, v{Sc+i}") for i in range(16)]
            ad = [lambda i=i: e(f"v_add_f32 v{vl}, v{vl}, v{Sc+i}") for i in range(16)]
            cv = [lambda j=j: e(f"v_cvt_pk_bf16_f32 v{Sc+j}, v{Sc+2*j}, v{Sc+2*j+1}") for j in range(8)]
            return ex, ad, cv
        def check(par):
            def f():
                e(f"v_cmp_lt_f32 vcc, s39, v{mx}")
                e.raw(f"s_cbranch_vccnz L_rare{par}")
                e.label(f"L_back{par}")
            return f
        def advance(reg, smask):
            return [lambda: e.raw(f"s_bitcmp1_b32 s{smask}, 0"), lambda: e.raw("s_cselect_b32 s47, s41, s40"), lambda: e.raw(f"s_lshr_b32 s{smask}, s{smask}, 1"),
                    lambda: (addr(reg, 0), e(f"v_add_u32 v{reg}, s47, v{reg}"))]
        def step(par, tag):
            Sc, Sn = (S0, S1) if par == 0 else (S1, S0)
            cyc = [0, 1, 2, 3, 4, 5] if par == 0 else [4, 5, 2, 3, 0, 1]
            prev = vitems(Sn)
            pend = [lambda: prev[14][1](cyc[4]), lambda: prev[15][1](cyc[5])]
            its = kitems(Sn) + vitems(Sc)
            ex, ad, cv = softmax_ops(Sc)
            fill = {}
            for i in range(16):
                fill.setdefault(i, []).append(ex[i])
                fill.setdefault(i + 1, []).append(ad[i])
            for j in range(8): fill.setdefault(2 * j + 2, []).append(cv[j])
            for k, f in enumerate(advance(vK, 42)): fill.setdefault(17 + k // 2, []).append(f)
            ops = []
            mt = maxtree(Sn)
            fm = [lambda i=i: e(f"v_fma_f32 v{Sn+i}, v{Sn+i}, s38, v{negm}") for i in range(16)]
            ops = fm[:3] + [mt[0]]
            for k in range(6): ops += fm[3 + 2 * k: 5 + 2 * k] + [mt[1 + k]]
            ops += [fm[15], mt[7]]
            slots = []
            for g in range(19, 26): slots += [g, g]
            for g in range(26, 30): slots += [g, g, g]
            for f, g in zip(ops, slots): fill.setdefault(g, []).append(f)
            for k, f in enumerate(advance(vV, 43)): fill.setdefault(26 + k, []).append(f)
            e.raw("s_barrier")
            pipeline(its, cyc, {}, 32, fill, pending=pend, tail_pending=2, after_pending=check(tag))
            e.drain()
        e.raw(".p2align 3")
        e.label("L_loop")
        m0 = len(e.L)
        step(0, "A")
        e.raw("s_cmp_eq_u32 s49, 7"); e.raw("s_cbranch_scc1 L_tail")
        m1 = len(e.L)
        step(1, "B")
        e.raw("s_add_u32 s49, s49, 1"); e.raw("s_branch L_loop")
        m2 = len(e.L)
        A_, B_ = e.L[m0:m1], e.L[m1:m2]
        self.segs.append(("pre+A", self.segs[0][1][-40:] + A_))
        self.segs.append(("A+B+A", A_ + B_ + A_))
        def rare(tag, Sc):
            e.label(f"L_rare{tag}")
            k = len(e.L)
            e(f"v_mov_b32 v{t0}, v{mx}"); e.raw("s_nop 1"); e(f"v_permlane32_swap_b32 v{mx}, v{t0}"); e.raw("s_nop 0")
            e(f"v_max3_f32 v{t0}, v{mx}, v{t0}, 0")
            e(f"v_sub_f32 v{negm}, v{negm}, v{t0}")
            e(f"v_exp_f32 v{t1}, -v{t0}")
            for i in range(16): e(f"v_sub_f32 v{Sc+i}, v{Sc+i}, v{t0}")
            e(f"v_mul_f32 v{vl}, v{vl}, v{t1}")
            for i in range(128): e(f"v_mul_f32 v{i}, v{i}, v{t1}")
            e.raw("s_nop 1")
            e.raw(f"s_branch L_back{tag}")
            self.segs.append((f"rare{tag}", [f"{MF} {v16(0)}, {v4(fr(0))}, {v4(S0)}, {v16(0)}", "s_nop 0", "s_nop 0"] + e.L[k:]))
        rare("A", S0); rare("B", S1); rare("C", S1)

        e.raw(".p2align 3")
        e.label("L_tail")
        m3 = len(e.L)
        self.stamp(e, 4)
        e(f"v_add_u32 v{vV}, {((slotV(15) - slotV(14) - 2)*S) & 0xffffffff}, v{vV}")
        e(f"v_mbcnt_lo_u32_b32 v{vK}, -1, 0"); e(f"v_mbcnt_hi_u32_b32 v{vK}, -1, v{vK}"); e(f"v_lshlrev_b32 v{vK}, 4, v{vK}")
        e.raw(f"s_mul_i32 s47, s30, {(OXB-OXA)*S}"); e.raw("s_lshl_b32 s48, s29, 14")
        e.raw(f"s_add_u32 s50, s48, {OXA*S}"); e.raw("s_add_u32 s50, s50, s47")
        e.raw(f"s_add_u32 s51, s48, {OXB*S}"); e.raw("s_sub_u32 s51, s51, s47")
        Sc, Sn = S1, S0
        cyc = [4, 5, 2, 3, 0, 1]
        prev = vitems(Sn)
        pend = [lambda: prev[14][1](cyc[4]), lambda: prev[15][1](cyc[5])]
        its = vitems(Sc)
        ex, ad, cv = softmax_ops(Sc)
        def first_half():
            check("C")()
            for i in range(8):
                ex[i]()
                if i: ad[i - 1]()
                if i >= 2 and i % 2 == 0: cv[i // 2 - 1]()
            ex[8](); ad[7](); cv[3]()
            e.raw("s_nop 0")
            ex[9]()
        fill = {}
        fill[0] = [ad[8], ex[10], ad[9]]
        fill[1] = [cv[4], ex[11], ad[10]]
        fill[2] = [ex[12], ad[11], cv[5]]
        fill[3] = [ex[13], ad[12]]
        fill[4] = [ex[14], ad[13], cv[6]]
        fill[5] = [ex[15], ad[14]]
        vown, vpar, sa = 192, 193, 194
        fill[6] = [ad[15], cv[7], lambda: e(f"v_mov_b32 v{t0}, v{vl}"), lambda: e(f"v_add_u32 v{vpar}, s51, v{vK}"), lambda: e(f"v_add_u32 v{vown}, s50, v{vK}")]
        fill[7] = [lambda: e(f"v_permlane32_swap_b32 v{vl}, v{t0}"), lambda: e.raw("s_nop 0"), lambda: e(f"v_add_f32 v{vl}, v{vl}, v{t0}"),
                   lambda: e(f"ds_write_b64 v{vpar}, v[{negm}:{vl}]")]
        def stats_read(i):
            e(f"ds_read_b64 v[196:197], v{vown}")
        fill[12] = [lambda: e(f"v_min_f32 v198, v{negm}, v196"), lambda: e(f"v_sub_f32 v199, v198, v{negm}"), lambda: e(f"v_sub_f32 v200, v198, v196"),
                    lambda: e("v_exp_f32 v199, v199")]
        fill[13] = [lambda: e("v_exp_f32 v200, v200"), lambda: e(f"v_mul_f32 v201, v{vl}, v199"), lambda: e("v_fma_f32 v201, v197, v200, v201"), lambda: e("v_rcp_f32 v201, v201")]
        fill[14] = [lambda: e(f"v_mul_f32 v{sa}, v199, v201")]
        e.raw("s_barrier")
        pipeline(its, cyc, {10: 16}, 16, fill, pending=pend, after_pending=first_half, on_cut=stats_read)
        for tp in (7, 6, 5, 4):
            for i in range(0, 16, 2):
                r = 16 * tp + i
                e(f"v_pk_mul_f32 v[{r}:{r+1}], v[{r}:{r+1}], v[{sa}:{sa+1}] op_sel_hi:[1,0]")
            for q in range(4):
                e(f"ds_write_b128 v{vown}, {v4(16*tp+4*q)} offset:{((tp-4)*4+q)*1024}")
        e.drain(); e.raw("s_barrier")
        self.stamp(e, 5)
        for n in range(16): e(f"ds_read_b128 {v4(Q+4*n)}, v{vpar} offset:{n*1024}")
        for n in range(8):
            for i in range(0, 8, 2):
                r = 8 * n + i
                e(f"v_pk_fma_f32 v[{r}:{r+1}], v[{r}:{r+1}], v[{sa}:{sa+1}], v[{Q+r}:{Q+r+1}] op_sel_hi:[1,0,1]")
            for i in range(4): e(f"v_cvt_pk_bf16_f32 v{64+4*n+i}, v{8*n+2*i}, v{8*n+2*i+1}")
        e.drain()
        for n in range(8): e(f"ds_write_b128 v{vpar}, {v4(64+4*n)} offset:{n*1024}")
        e.drain(); e.raw("s_barrier")
        self.stamp(e, 6)
        e(f"v_mov_b32 v{t0}, v{vown}")
        items = []
        for s in range(7):
            acc = S0 if s % 2 == 0 else S1
            for n in range(16):
                ks = n if s % 2 == 0 else (n + 8) % 16
                def rd(b, s=s, n=n, ks=ks):
                    if n == 0 and s > 0:
                        e(f"v_add_u32 v{vWO}, {((SLOT_WO[s]-SLOT_WO[s-1])*S) & 0xffffffff}, v{vWO}")
                    addr(vWO, (ks >> 3) * 16384)
                    e(f"ds_read_b64_tr_b16 v[{fr(b)}:{fr(b)+1}], v{vWO} offset:{(ks&7)*2048}")
                    e(f"ds_read_b64_tr_b16 v[{fr(b)+2}:{fr(b)+3}], v{vWO} offset:{(ks&7)*2048+1024}")
                def mf(b, acc=acc, n=n, ks=ks):
                    e(f"{MF} {v16(acc)}, {v4(fr(b))}, {v4(64+4*ks)}, {'0' if n == 0 else v16(acc)}")
                items.append((rd, mf))
        def store_ops(s):
            acc = S0 if s % 2 == 0 else S1
            pk = 8 * (s % 2)
            ops = [lambda i=i: e(f"v_cvt_pk_bf16_f32 v{pk+i}, v{acc+2*i}, v{acc+2*i+1}") for i in range(8)]
            def st():
                e.raw("s_add_u32 s47, s45, s46"); e.raw("s_add_u32 s48, s47, 0x4000")
                e(f"buffer_store_dwordx4 {v4(pk)}, v{vK}, s[32:35], s47 offen {self.stpol}")
                e(f"buffer_store_dwordx4 {v4(pk+4)}, v{vK}, s[32:35], s48 offen {self.stpol}")
                e.raw("s_add_u32 s46, s46, 0x20000"); e.raw(f"s_cmp_ge_u32 s46, {7<<17}"); e.raw("s_cselect_b32 s46, 0, s46")
            return ops + [st]
        fill = {}
        for n in range(8): fill.setdefault(n // 2, []).append(lambda n=n: e(f"ds_read_b128 {v4(96+4*n)}, v{t0} offset:{n*1024}"))
        for s in range(6):
            for k, f in enumerate(store_ops(s)): fill.setdefault(16 * (s + 1) + 4 + k // 2, []).append(f)
        cuts = {16 * s - 2: 16 * (s + 1) for s in range(1, 7)}
        pipeline(items, [0, 1, 2, 3, 4, 5], cuts, 16, fill)
        e.raw("s_nop 7"); e.raw("s_nop 3")
        for f in store_ops(6): f()
        self.stamp(e, 7)
        self.segs.append(("A+tail", A_ + e.L[m3:]))
        if self.ts:
            e.raw("s_cmp_lg_u32 s26, 0"); e.raw("s_cbranch_scc1 L_end")
            self.stamp_store(e, 8, 0)

    def reduce_kernel(self, e):
        e.raw("s_cmp_ge_u32 s2, 224"); e.raw("s_cbranch_scc1 R_end")
        e.raw("s_load_dwordx2 s[4:5], s[0:1], 40"); e.raw("s_load_dwordx2 s[6:7], s[0:1], 56")
        e.raw("v_lshrrev_b32 v1, 6, v0"); e.raw("v_and_b32 v0, 63, v0"); e.raw("v_readfirstlane_b32 s3, v1")
        e.raw("v_lshlrev_b32 v2, 4, v0")
        e.raw("s_lshl_b32 s16, s2, 2"); e.raw("s_add_u32 s16, s16, s3")
        e.raw("s_lshl_b32 s17, s16, 14")
        e.raw("s_waitcnt lgkmcnt(0)")
        e.raw("s_mov_b32 s8, s6"); e.raw("s_mov_b32 s9, s7"); e.raw(f"s_mov_b32 s10, {PART_BYTES}"); e.raw("s_mov_b32 s11, 0x20000")
        e.raw("s_mov_b32 s12, s4"); e.raw("s_mov_b32 s13, s5"); e.raw(f"s_mov_b32 s14, {1024*896}"); e.raw("s_mov_b32 s15, 0x20000")
        for h in range(16):
            if h % 4 == 0 and h: e.raw("s_add_u32 s17, s17, 0x1000")
            e.raw(f"buffer_load_dwordx4 v[{16+4*h}:{19+4*h}], v2, s[8:11], s17 offen offset:{(h&3)*1024}")
        e.raw(f"s_mov_b32 s18, {(2**32 + 55)//56}"); e.raw("s_mul_hi_u32 s19, s16, s18"); e.raw("s_mul_i32 s20, s19, 56"); e.raw("s_sub_u32 s20, s16, s20")
        e.raw("s_lshl_b32 s21, s19, 6"); e.raw("s_bfe_u32 s22, s20, 0x10001"); e.raw("s_lshl_b32 s22, s22, 5"); e.raw("s_add_u32 s21, s21, s22"); e.raw("s_mul_i32 s21, s21, 896")
        e.raw("s_lshr_b32 s22, s20, 3"); e.raw("s_lshl_b32 s22, s22, 7"); e.raw("s_add_u32 s21, s21, s22")
        e.raw("s_bfe_u32 s22, s20, 0x10002"); e.raw("s_lshl_b32 s22, s22, 6"); e.raw("s_add_u32 s21, s21, s22")
        e.raw("s_and_b32 s22, s20, 1"); e.raw("s_lshl_b32 s22, s22, 5"); e.raw("s_add_u32 s21, s21, s22")
        e.raw("v_and_b32 v3, 31, v0"); e.raw("v_mul_u32_u24 v3, 896, v3"); e.raw("v_lshrrev_b32 v4, 5, v0"); e.raw("v_lshl_add_u32 v3, v4, 4, v3")
        e.raw("s_mov_b32 s23, 0xffff0000")
        for h in range(16):
            e.raw(f"s_waitcnt vmcnt({15-h})")
            for i in range(4):
                r = 16 + 4 * h + i
                if h == 0:
                    e.raw(f"v_lshlrev_b32 v{8+2*i}, 16, v{r}"); e.raw(f"v_and_b32 v{9+2*i}, s23, v{r}")
                else:
                    e.raw(f"v_lshlrev_b32 v5, 16, v{r}"); e.raw(f"v_and_b32 v6, s23, v{r}")
                    e.raw(f"v_add_f32 v{8+2*i}, v{8+2*i}, v5"); e.raw(f"v_add_f32 v{9+2*i}, v{9+2*i}, v6")
        for i in range(4): e.raw(f"v_cvt_pk_bf16_f32 v{16+i}, v{8+2*i}, v{9+2*i}")
        e.raw("buffer_store_dwordx4 v[16:19], v3, s[12:15], s21 offen")
        e.label("R_end"); e.raw("s_endpgm")

def kd(name, vgpr, sgpr):
    return [ '.section .rodata,"a"', ".p2align 6", f".amdhsa_kernel {name}", f"  .amdhsa_next_free_vgpr {vgpr}", f"  .amdhsa_next_free_sgpr {sgpr}",
        f"  .amdhsa_accum_offset {(vgpr+3)//4*4}", "  .amdhsa_group_segment_fixed_size 0", "  .amdhsa_kernarg_size 64", "  .amdhsa_user_sgpr_count 2",
        "  .amdhsa_user_sgpr_kernarg_segment_ptr 1", "  .amdhsa_system_sgpr_workgroup_id_x 1", ".end_amdhsa_kernel"]

def build(ts=False, stpol=""):
    g = G(ts=ts); g.stpol = stpol
    K1 = NAME + "_kernel"; K2 = "gqa_reduce_kernel"
    out = [f"; Fused GQA block: Q-proj + flash attention + O-proj partials, then head reduction. Generated by gen/gen.py",
           f"; @launch kernel={K1} grid=(256,1,1) block=(512,1,1) lds=163840",
           f"; @launch kernel={K2} grid=(224,1,1) block=(256,1,1) lds=0",
           '.amdgcn_target "amdgcn-amd-amdhsa--gfx950"', ".text", f".globl {K1}", ".p2align 8", f".type {K1},@function", f"{K1}:", "L_start:"]
    e = Em(); g.prologue(e); g.loader(e); ld = list(e.L)
    e2 = Em(); g.compute(e2)
    out += e.L + e2.L + ["L_end:", "s_endpgm", "L_code_end:"]
    e3 = Em(); g.reduce_kernel(e3)
    out += [f".globl {K2}", ".p2align 8", f".type {K2},@function", f"{K2}:"] + e3.L
    out += kd(K1, 256, 96) + kd(K2, 80, 32)
    errs = check_hazards(ld, "loader") + check_hazards(e3.L, "reduce")
    for n, l in g.segs: errs += check_hazards(l, n)
    for x in dict.fromkeys(errs): print("HAZARD", x, file=sys.stderr)
    nb_l = sum(1 for l in ld if l == "s_barrier")
    return "\n".join(out) + "\n"

if __name__ == "__main__":
    ap = argparse.ArgumentParser()
    ap.add_argument("-o", default="cdna_kernels/" + NAME + ".s")
    ap.add_argument("--ts", action="store_true")
    ap.add_argument("--stpol", default="")
    a = ap.parse_args()
    open(a.o, "w").write(build(ts=a.ts, stpol=a.stpol))
```

```python
import re

def regs_of(tok):
    tok = tok.strip()
    tok = tok.lstrip('-')
    if tok.startswith('abs') or tok.startswith('|'):
        tok = tok.replace('abs(', '').replace(')', '').replace('|', '')
    m = re.fullmatch(r'([vs])(\d+)', tok)
    if m: return {(m.group(1), int(m.group(2)))}
    m = re.fullmatch(r'([vs])\[(\d+):(\d+)\]', tok)
    if m: return {(m.group(1), i) for i in range(int(m.group(2)), int(m.group(3)) + 1)}
    if tok == 'vcc': return {('s', 106), ('s', 107)}
    if tok == 'm0': return {('s', 124)}
    if tok == 'exec': return {('s', 126), ('s', 127)}
    return set()

TRANS = ('v_exp_f32', 'v_rcp_f32', 'v_log_f32', 'v_rsq_f32', 'v_sqrt_f32')

def parse(ins):
    s = ins.split(';')[0].strip()
    if not s or s.endswith(':') or s.startswith('.'): return None
    parts = s.split(None, 1)
    mn = parts[0]
    ops = []
    if len(parts) > 1:
        ops = [o.strip() for o in re.split(r',(?![^\[]*\])', parts[1])]
        new = []
        for o in ops:
            new.append(o.split()[0] if o.split() else o)
        ops = new
    R = lambda i: regs_of(ops[i]) if i < len(ops) else set()
    allr = lambda a: set().union(*[R(i) for i in range(a, len(ops))]) if len(ops) > a else set()
    if mn.startswith('global_atomic') and ' sc0' in s:
        return mn, R(0), allr(1)
    if mn.startswith('ds_write') or mn.startswith('buffer_store') or mn.startswith('global_store') or mn.startswith('global_atomic') or mn.startswith('buffer_atomic'):
        return mn, set(), allr(0)
    if mn.startswith('buffer_load') and ' lds' in s:
        return mn, set(), allr(0) | {('s', 124)}
    if mn.startswith('v_permlane32_swap') or mn.startswith('v_permlane16_swap'):
        return mn, R(0) | R(1), R(0) | R(1)
    if mn.startswith('v_fmac') or mn.startswith('v_pk_fmac'):
        return mn, R(0), allr(0)
    if mn.startswith('s_cmp') or mn.startswith('s_cbranch') or mn.startswith('s_branch') or mn in ('s_barrier', 's_waitcnt', 's_nop', 's_endpgm', 's_setprio', 's_sleep'):
        return mn, set(), allr(0)
    if mn.startswith('v_cndmask') and len(ops) == 3:
        return mn, R(0), allr(1) | regs_of('vcc')
    return mn, R(0), allr(1)

def is_valu(mn): return mn.startswith('v_') and not mn.startswith('v_mfma')
def is_mfma(mn): return mn.startswith('v_mfma')
def is_mem(mn): return mn.startswith(('ds_', 'buffer_', 'global_'))

def check_hazards(lines, name=""):
    hist = []
    pos = 0
    errs = []
    for ins in lines:
        p = parse(ins)
        if p is None: continue
        mn, W, Rd = p
        for (q, pmn, pW, pR, ptxt) in reversed(hist):
            d = pos - q
            if d > 20: break
            need = 0
            vW = {r for r in pW if r[0] == 'v'}
            if is_mfma(pmn):
                passes = 8 if '32x32x16' in pmn else 4
                big = {8: 12, 4: 8}[passes]
                if is_mfma(mn):
                    ops = [o.strip() for o in re.split(r',(?![^\[]*\])', ins.split(';')[0].split(None, 1)[1])]
                    A = regs_of(ops[1]) | regs_of(ops[2]); C = regs_of(ops[3]); D = regs_of(ops[0])
                    if vW & A: need = max(need, big)
                    if vW & C and C != vW: need = max(need, {8: 10, 4: 6}[passes])
                    if vW & D and not (vW & C): need = max(need, big)
                elif is_valu(mn) or is_mem(mn):
                    if vW & (Rd | W): need = max(need, big)
                    pops = [o.strip() for o in re.split(r',(?![^\[]*\])', ptxt.split(';')[0].split(None, 1)[1])]
                    if is_valu(mn) and regs_of(pops[3]) & W: need = max(need, {8: 7, 4: 3}[passes])
            elif is_valu(pmn):
                if is_mfma(mn) and vW & Rd: need = max(need, 2)
                if pmn.startswith(TRANS) and is_valu(mn) and not mn.startswith(TRANS) and vW & Rd: need = max(need, 1)
                if mn.startswith('v_permlane') and vW & Rd: need = max(need, 2)
                if mn.startswith(('v_readfirstlane', 'v_readlane')) and vW & Rd: need = max(need, 1)
                sW = {r for r in pW if r[0] == 's'}
                if sW:
                    if is_mem(mn) and sW & Rd: need = max(need, 5)
                    if is_valu(mn) and sW & Rd: need = max(need, 2)
            elif pmn.startswith(('buffer_store_dwordx4', 'global_store_dwordx4', 'buffer_store_dwordx3')):
                data = regs_of([o.strip() for o in re.split(r',(?![^\[]*\])', ptxt.split(None, 1)[1])][0 if pmn.startswith('buffer') else 1])
                if data & W: need = max(need, 2)
            elif pmn.startswith('s_') and ('s', 124) in pW:
                if mn.startswith('buffer_load') and ('s', 124) in Rd: need = max(need, 1)
            if d < need:
                errs.append(f"{name}: hazard need {need} have {d}: [{ptxt.strip()}] -> [{ins.strip()}]")
        hist.append((pos + 1 if True else pos, mn, W, Rd, ins))
        if mn == 's_nop':
            n = int(ins.split()[1], 0) + 1
            pos += n
            hist[-1] = (pos, mn, W, Rd, ins)
        else:
            pos += 1
    return errs

class Em:
    def __init__(self):
        self.L = []
        self.ds = []
    def raw(self, s): self.L.append(s)
    def __call__(self, s):
        p = parse(s)
        if p is not None:
            mn, W, Rd = p
            touched = W | Rd
            last = -1
            for i, d in enumerate(self.ds):
                if d & touched: last = i
            if last >= 0:
                n = len(self.ds) - 1 - last
                n = min(n, 15)
                self.L.append(f"s_waitcnt lgkmcnt({n})")
                self.ds = self.ds[len(self.ds) - n:] if n else []
            if mn.startswith('ds_'):
                self.ds.append(set(W))
        self.L.append(s)
    def need(self, touched):
        last = -1
        for i, d in enumerate(self.ds):
            if d & touched: last = i
        if last >= 0:
            n = min(len(self.ds) - 1 - last, 15)
            self.L.append(f"s_waitcnt lgkmcnt({n})")
            self.ds = self.ds[len(self.ds) - n:] if n else []
    def drain(self):
        if self.ds:
            self.L.append("s_waitcnt lgkmcnt(0)")
            self.ds = []
    def label(self, n): self.L.append(f"{n}:")
```

```python
import sys, argparse
from emit import Em, check_hazards, regs_of

NAME = "standalone__gqa_block_cached__near_ridge"
S = 32768
TS_OFF = 16 << 20
PART_BYTES = 16 * 56 * 16 * 1024
FLAG_OFF = 15 << 20

SLOT_WQ = [2, 3, 4, 2, 0, 1, 3]
def slotK(k): return 4 if k == 0 else KV_RING[(2 * k - 2) % 5]
def slotV(v): return KV_RING[(2 * 15 - 2 + 2) % 5] if v == 15 else KV_RING[(2 * v + 1) % 5]
KV_RING = [0, 1, 2, 3, 4]
SLOT_WO = [1, 2, 0, 3, 4, 1, 2]
OXA, OXB = 3, 4
NB = 34

class G:
    def __init__(self, o):
        self.o = o
        self.ts = o.ts
        self.segs = []

    def stamp(self, e, i):
        if self.ts: e.raw(f"s_memrealtime s[{70+2*i}:{71+2*i}]")
    def stamp_store(self, e, nst, which):
        if not self.ts: return
        e.raw("s_waitcnt lgkmcnt(0)")
        for i in range(2 * nst): e.raw(f"v_mov_b32 v{100+i}, s{70+i}")
        e.raw(f"s_lshl_b32 s3, s2, 8"); e.raw(f"s_add_u32 s3, s3, {TS_OFF + which*128}")
        e.raw("v_mov_b32 v99, s3")
        for i in range(0, 2 * nst, 4):
            e.raw(f"global_store_dwordx4 v99, v[{100+i}:{103+i}], s[18:19] offset:{4*i}")

    def prologue(self, e):
        e.raw("s_cmp_ge_u32 s2, 256"); e.raw("s_cbranch_scc1 L_end")
        e.raw("s_load_dwordx16 s[4:19], s[0:1], 0")
        if self.ts or self.o.amp:
            e.raw("s_memrealtime s[70:71]")
        e.raw("v_lshrrev_b32 v1, 6, v0")
        e.raw("s_and_b32 s20, s2, 7")
        e.raw("v_readfirstlane_b32 s26, v1")
        e.raw("s_lshr_b32 s21, s2, 5")
        e.raw("s_bfe_u32 s22, s2, 0x20003")
        e.raw("s_lshr_b32 s28, s22, 1")
        e.raw("s_lshl_b32 s23, s20, 1"); e.raw("s_add_u32 s23, s23, s28")
        e.raw("s_and_b32 s24, s22, 1")
        e.raw("s_lshl_b32 s25, s21, 1"); e.raw("s_add_u32 s25, s25, s24")
        e.raw("s_mul_i32 s27, s25, 7"); e.raw("s_lshr_b32 s27, s27, 4")
        e.raw("v_and_b32 v0, 63, v0")
        e.raw("s_cmp_lt_u32 s26, 4"); e.raw("s_cbranch_scc1 L_compute")

    def code_prefetch(self, e, lo, hi, sidx):
        e.raw("s_getpc_b64 s[64:65]")
        lab = f"L_pc_{lo}"
        e.label(lab)
        e.raw(f"s_add_u32 s64, s64, {lo}-{lab}"); e.raw("s_addc_u32 s65, s65, " + ("0" if lo != "L_start" else "-1"))
        e.raw("s_lshr_b32 s66, s2, 3"); e.raw("s_lshl_b32 s66, s66, 2"); e.raw(f"s_add_u32 s66, s66, s{sidx}"); e.raw("s_lshl_b32 s66, s66, 8")
        e.raw(f"s_min_u32 s66, s66, {hi}-{lo}-256")
        e.raw("s_add_u32 s64, s64, s66"); e.raw("s_addc_u32 s65, s65, 0")
        for i in range(4): e.raw(f"s_load_dword s67, s[64:65], {64*i}")

    def loader(self, e):
        o = self.o
        VX, VWQ, VK, VV, VWO = 8, 12, 16, 20, 24
        e.raw("s_setprio 2")
        e.raw("s_sub_u32 s29, s26, 4")
        e.raw("v_lshrrev_b32 v1, 3, v0")
        e.raw("v_and_b32 v2, 7, v0")
        e.raw("v_lshrrev_b32 v3, 1, v1")
        e.raw("v_xor_b32 v4, v2, v3"); e.raw("v_lshlrev_b32 v4, 4, v4")
        e.raw("v_mul_u32_u24 v6, 896, v1")
        e.raw(f"s_mul_i32 s55, s29, {16*896}")
        e.raw(f"v_add3_u32 v{VX}, v6, v4, s55")
        e.raw("v_xor_b32 v5, 64, v4")
        e.raw(f"s_add_u32 s55, s55, {8*896-1024}")
        e.raw(f"v_add3_u32 v{VX+1}, v6, v5, s55")
        e.raw("v_lshlrev_b32 v3, 2, v3"); e.raw("v_and_b32 v3, 4, v3"); e.raw("v_xor_b32 v3, v2, v3"); e.raw("v_lshlrev_b32 v3, 4, v3")
        e.raw("s_lshl_b32 s54, s29, 7")
        e.raw(f"v_lshl_add_u32 v7, v1, 13, v3"); e.raw(f"v_add_u32 v{VWQ}, s54, v7")
        for i in range(1, 4): e.raw(f"v_add_u32 v{VWQ+i}, {i*(65536-1024)}, v{VWQ}")
        e.raw("s_lshl_b32 s52, s29, 13")
        e.raw("s_lshl_b32 s53, s29, 11")
        e.raw(f"s_mul_i32 s30, s25, {64*896}")
        e.raw("s_lshl_b32 s31, s23, 9")
        e.raw("s_lshl_b32 s62, s27, 19")
        e.raw(f"s_mov_b32 s34, {64*896}"); e.raw("s_mov_b32 s35, 0x20000")
        e.raw(f"s_sub_u32 s46, {448*8192}, s31"); e.raw("s_mov_b32 s47, 0x20000")
        e.raw("s_waitcnt lgkmcnt(0)")
        e.raw("s_add_u32 s32, s4, s30"); e.raw("s_addc_u32 s33, s5, 0")
        e.raw("s_add_u32 s44, s10, s31"); e.raw("s_addc_u32 s45, s11, 0")
        def rest_setup():
            e.raw("v_lshl_add_u32 v7, v1, 9, s54")
            for i in range(4):
                e.raw(f"v_add_u32 v{VK+i}, v7, v{4+(i&1)}"); e.raw(f"v_add_u32 v{VV+i}, v7, v3")
                if i:
                    e.raw(f"v_add_u32 v{VK+i}, {i*3072}, v{VK+i}"); e.raw(f"v_add_u32 v{VV+i}, {i*3072}, v{VV+i}")
            e.raw(f"s_mul_i32 s55, s29, {64*896}")
            e.raw(f"v_add3_u32 v{VWO}, v6, v3, s55")
            for i in range(1, 4): e.raw(f"v_add_u32 v{VWO+i}, {i*(8*896-1024)}, v{VWO}")
            e.raw("s_lshl_b32 s30, s21, 3"); e.raw("s_add_u32 s30, s30, s20"); e.raw("s_lshl_b32 s30, s30, 19")
            e.raw("s_add_u32 s36, s6, s30"); e.raw("s_addc_u32 s37, s7, 0"); e.raw("s_mov_b32 s38, 0x80000"); e.raw("s_mov_b32 s39, 0x20000")
            e.raw("s_add_u32 s40, s8, s30"); e.raw("s_addc_u32 s41, s9, 0"); e.raw("s_mov_b32 s42, 0x80000"); e.raw("s_mov_b32 s43, 0x20000")
            e.raw(f"s_mul_i32 s30, s23, {256*896}")
            e.raw("s_add_u32 s48, s12, s30"); e.raw("s_addc_u32 s49, s13, 0"); e.raw(f"s_mov_b32 s50, {256*896}"); e.raw("s_mov_b32 s51, 0x20000")
            e.raw("s_lshl_b32 s63, s27, 7")
            packed = sum(o.lag[u] << (4 * u) for u in range(4))
            for r in range(4):
                e.raw(f"s_sub_u32 s30, {r+4}, s22"); e.raw("s_and_b32 s30, s30, 3"); e.raw("s_lshl_b32 s30, s30, 2")
                e.raw(f"s_lshr_b32 s30, {packed}, s30"); e.raw("s_and_b32 s30, s30, 15"); e.raw("s_lshl_b32 s30, s30, 15")
                e.raw(f"s_sub_u32 s{56+r}, 0, s30")
        pieces = []
        def half(t, i, slot, hf):
            def f():
                e.raw(f"s_add_u32 m0, s52, {slot*S + hf*4096}")
                step = {"WQ": 32 * 8192, "K": 16384, "V": 16384, "WO": 32 * 896}[t]
                if hf == 0:
                    if t == "WQ":
                        e.raw("s_mov_b32 s60, s62"); e.raw("s_add_u32 s62, s62, 0x80000"); e.raw(f"s_cmp_ge_u32 s62, {7<<19}"); e.raw("s_cselect_b32 s62, 0, s62")
                    elif t == "WO":
                        e.raw("s_mov_b32 s60, s63"); e.raw("s_add_u32 s63, s63, 128"); e.raw("s_cmp_ge_u32 s63, 896"); e.raw("s_cselect_b32 s63, 0, s63")
                    else:
                        e.raw(f"s_add_u32 s60, s{56+(i&3)}, {i*S}"); e.raw("s_and_b32 s60, s60, 0x7ffff")
                else:
                    e.raw(f"s_add_u32 s60, s60, {step}")
                vb, srd = {"WQ": (VWQ, 44), "K": (VK, 36), "V": (VV, 40), "WO": (VWO, 48)}[t]
                for k in range(4):
                    e.raw(f"buffer_load_dwordx4 v{vb+k}, s[{srd}:{srd+3}], s60 offen offset:{k*1024} lds")
            return f
        def unit(t, i, slot, av):
            pieces.append(((t, i, 0), 4, av, half(t, i, slot, 0)))
            pieces.append(((t, i), 4, av, half(t, i, slot, 1)))
        def xpiece(k):
            def f():
                if k == 0:
                    e.raw("s_mov_b32 m0, s53"); e.raw("s_lshl_b32 s61, s27, 7")
                else:
                    e.raw("s_cmp_eq_u32 s28, 0"); e.raw(f"s_cselect_b32 s30, {k}, {7-k}")
                    e.raw("s_add_u32 s61, s30, s27"); e.raw("s_lshl_b32 s30, s30, 13"); e.raw("s_add_u32 m0, s30, s53")
                    e.raw("s_sub_u32 s31, s61, 7"); e.raw("s_cmp_ge_u32 s61, 7"); e.raw("s_cselect_b32 s61, s31, s61"); e.raw("s_lshl_b32 s61, s61, 7")
                for i in range(2):
                    e.raw(f"buffer_load_dwordx4 v{VX+i}, s[32:35], s61 offen offset:{i*1024} lds")
            return f
        pieces.append((("X", 0), 2, -1, xpiece(0)))
        unit("WQ", 0, SLOT_WQ[0], -1)
        for k in range(1, 7): pieces.append((("X", k), 2, -1, xpiece(k)))
        avWQ = [-1, -1, -1, 1, 2, 2, 2]
        for i in range(1, 7): unit("WQ", i, SLOT_WQ[i], avWQ[i])
        unit("K", 0, slotK(0), 3)
        unit("K", 1, slotK(1), 5); unit("V", 0, slotV(0), 6); unit("K", 2, slotK(2), 4)
        for t in range(13):
            unit("V", t + 1, slotV(t + 1), 9 + t); unit("K", t + 3, slotK(t + 3), 9 + t)
        unit("V", 14, slotV(14), 9 + 13); unit("V", 15, slotV(15), 9 + 13)
        avWO = [9 + 14, 9 + 14, 25, 28, 28, 28, 29]
        for i in range(7): unit("WO", i, SLOT_WO[i], avWO[i])
        need = {0: ("WQ", 0), 8: ("K", 0)}
        for i in range(1, 7): need[i] = ("WQ", i)
        for t in range(16): need[9 + t] = ("V", t)
        for i in range(7): need[27 + i] = ("WO", i)
        names = [p[0] for p in pieces]
        endpos = []; c = 0
        for p in pieces: c += p[1]; endpos.append(c)
        nxt = 0; needpos = 0; waited = 0
        look = dict(o.look)
        for b in range(NB):
            if b in need: needpos = endpos[names.index(need[b])]
            target = needpos + look.get(b, o.lookdef)
            while nxt < len(pieces) and pieces[nxt][2] < b and (endpos[nxt - 1] if nxt else 0) < target:
                pieces[nxt][3]()
                nxt += 1
                if nxt == 3:
                    self.code_prefetch(e, "L_start", "L_code_end", 29)
                if nxt == 7: rest_setup()
            issued = endpos[nxt - 1]
            assert issued >= needpos, (b, issued, needpos)
            if needpos > waited:
                e.raw(f"s_waitcnt vmcnt({issued - needpos})"); waited = needpos
            e.raw("s_barrier")
            if b in o.lstamps: self.stamp(e, 1 + o.lstamps.index(b))
            if b == 9 + 11: self.code_prefetch(e, "L_tail", "L_code_end", 29)
        assert nxt == len(pieces)
        if self.ts:
            e.raw("s_cmp_lg_u32 s26, 4"); e.raw("s_cbranch_scc1 L_end")
            self.stamp_store(e, 8, 1)
        e.raw("s_endpgm")

    def compute(self, e):
        o = self.o
        O, Q, S0, S1, FR = 0, 128, 192, 208, 224
        vK, vV, negm, vl, mx, t0, t1, vWO = 248, 249, 250, 251, 252, 253, 254, 255
        vX, vWQ, lane16 = 192, 193, 194
        fr = lambda b: FR + 4 * b
        v4 = lambda r: f"v[{r}:{r+3}]"
        v16 = lambda r: f"v[{r}:{r+15}]"
        MF = "v_mfma_f32_32x32x16_bf16"
        e.label("L_compute")
        e.raw("s_and_b32 s29, s26, 1")
        e.raw("s_lshr_b32 s30, s26, 1")
        e("v_and_b32 v200, 31, v0"); e("v_lshrrev_b32 v201, 5, v0"); e("v_bfe_u32 v202, v0, 2, 2"); e("v_bfe_u32 v204, v0, 4, 1")
        e("v_and_b32 v206, 1, v0"); e("v_bfe_u32 v207, v0, 1, 1")
        e(f"v_lshlrev_b32 v{lane16}, 4, v0")
        e("v_bfe_u32 v205, v200, 1, 3"); e("v_xor_b32 v205, v205, v201"); e("v_lshlrev_b32 v205, 4, v205"); e("v_lshl_add_u32 v205, v200, 7, v205")
        e.raw("s_lshl_b32 s31, s29, 12"); e(f"v_add_u32 v{vX}, s31, v205")
        e.raw("s_lshl_b32 s31, s30, 12")
        e.raw(f"s_add_u32 s36, s31, {slotK(0)*S}"); e(f"v_add_u32 v{vK}, s36, v205")
        e("v_lshrrev_b32 v208, 1, v202"); e("v_xor_b32 v208, s30, v208"); e("v_lshlrev_b32 v208, 2, v208"); e("v_lshl_add_u32 v208, v204, 1, v208")
        e("v_add_u32 v209, v208, v206"); e("v_lshlrev_b32 v209, 4, v209"); e("v_lshl_add_u32 v209, v207, 3, v209")
        e("v_add_u32 v210, v208, v207"); e("v_lshlrev_b32 v210, 4, v210"); e("v_lshl_add_u32 v210, v206, 3, v210")
        e("v_lshl_add_u32 v213, v201, 3, v202"); e(f"v_lshl_add_u32 v{vWQ}, v213, 7, v209"); e(f"v_add_u32 v{vWQ}, {SLOT_WQ[0]*S}, v{vWQ}")
        e("v_lshl_add_u32 v213, v201, 2, v202")
        e(f"v_lshl_add_u32 v{vV}, v213, 7, v210"); e.raw(f"s_add_u32 s36, s31, {slotV(0)*S}"); e(f"v_add_u32 v{vV}, s36, v{vV}")
        e(f"v_lshl_add_u32 v{vWO}, v213, 7, v209"); e.raw(f"s_add_u32 s36, s31, {SLOT_WO[0]*S}"); e(f"v_add_u32 v{vWO}, s36, v{vWO}")
        e.raw("s_mov_b32 s38, 0x3db8aa3b")
        e.raw("s_mov_b32 s39, 0x41000000")
        e.raw(f"s_mov_b32 s40, {2*S}"); e.raw(f"s_mov_b32 s41, {(-3*S) & 0xffffffff}")
        mK = sum(1 << t for t in range(15) if slotK(t + 2) < slotK(t + 1))
        mV = sum(1 << t for t in range(14) if slotV(t + 1) < slotV(t))
        e.raw(f"s_mov_b32 s42, {mK}"); e.raw(f"s_mov_b32 s43, {mV}")
        e.raw("s_waitcnt lgkmcnt(0)")
        if o.tlb:
            e.raw("s_lshl_b32 s56, s21, 3"); e.raw("s_add_u32 s56, s56, s20"); e.raw("s_lshl_b32 s56, s56, 19")
            e.raw("v_mov_b32 v196, s56"); e.raw(f"s_mul_i32 s57, s23, {256*896}"); e.raw("v_mov_b32 v197, s57")
            e.raw("s_cmp_lg_u32 s26, 0"); e.raw("s_cbranch_scc1 L_notlb")
            e.raw("global_load_dword v198, v196, s[6:7]"); e.raw("global_load_dword v198, v196, s[8:9]"); e.raw("global_load_dword v198, v197, s[12:13]")
            e.label("L_notlb")
        e.raw("s_mov_b32 s32, s18"); e.raw("s_mov_b32 s33, s19"); e.raw(f"s_mov_b32 s34, {PART_BYTES}"); e.raw("s_mov_b32 s35, 0x20000")
        e.raw("s_mov_b32 s52, s14"); e.raw("s_mov_b32 s53, s15"); e.raw(f"s_mov_b32 s54, {1024*896}"); e.raw("s_mov_b32 s55, 0x20000")
        e.raw("s_mul_i32 s45, s25, 56"); e.raw("s_lshl_b32 s46, s26, 1"); e.raw("s_add_u32 s45, s45, s46"); e.raw("s_lshl_b32 s45, s45, 14")
        e.raw("s_lshl_b32 s46, s23, 10"); e.raw("s_add_u32 s45, s45, s46")
        e.raw("s_lshl_b32 s46, s27, 17")
        if o.fused: self.flag_init(e); self.flag_mark_setup(e)

        var = {}
        def addr(reg, want):
            cur = var.get(reg, 0)
            if cur != want:
                e(f"v_xor_b32 v{reg}, {cur ^ want}, v{reg}")
                var[reg] = want

        def pipeline(items, cyc, cuts, first_limit, fill, pending=(), tail_pending=0, on_cut=None, after_pending=None):
            F = len(cyc)
            st = {"nr": 0, "lim": first_limit}
            def reads(upto):
                while st["nr"] < min(st["lim"], len(items)) and st["nr"] <= upto:
                    items[st["nr"]][0](cyc[st["nr"] % F]); st["nr"] += 1
            reads(F - 1 - len(pending))
            for k, p in enumerate(pending):
                p(); reads(F - len(pending) + k)
            if after_pending: after_pending()
            for i in range(len(items) - tail_pending):
                if i in cuts:
                    assert st["nr"] == st["lim"], (i, st)
                    e.drain(); e.raw("s_barrier")
                    if on_cut: on_cut(i)
                    st["lim"] = cuts[i]
                    reads(i + F - 1)
                if o.pairwait and i % 2 == 0 and i + 1 < st["nr"]:
                    e.need(regs_of(v4(fr(cyc[(i + 1) % F]))))
                items[i][1](cyc[i % F])
                reads(i + F)
                for f in fill.get(i, []): f()
            assert st["nr"] == len(items)

        XF = 64
        def xread(s, kk):
            def f():
                addr(vX, kk * 32)
                e(f"ds_read_b128 {v4(XF + 16*s + 4*kk)}, v{vX} offset:{s*8192}")
            return f
        items = []
        for s in range(7):
            for T in range(4):
                for kk in range(4):
                    def rd(b, s=s, T=T, kk=kk):
                        if T == 0 and kk == 0 and s > 0:
                            d = (SLOT_WQ[s] - SLOT_WQ[s - 1]) * S
                            e(f"v_add_u32 v{vWQ}, {d & 0xffffffff}, v{vWQ}")
                        e(f"ds_read_b64_tr_b16 v[{fr(b)}:{fr(b)+1}], v{vWQ} offset:{T*8192+kk*2048}")
                        e(f"ds_read_b64_tr_b16 v[{fr(b)+2}:{fr(b)+3}], v{vWQ} offset:{T*8192+kk*2048+512}")
                    def mf(b, s=s, T=T, kk=kk):
                        c = "0" if (s == 0 and kk == 0) else v16(16 * T)
                        e(f"{MF} {v16(16*T)}, {v4(fr(b))}, {v4(XF+16*s+4*kk)}, {c}")
                    items.append((rd, mf))
        self.stamp(e, 1)
        e.raw("s_barrier")
        self.stamp(e, 2)
        for kk in range(4): xread(0, kk)()
        fill = {}
        def xcut(i):
            if i == 14:
                for kk in (3, 2, 1, 0): xread(1, kk)()
        xs = [(s, kk) for kk in range(4) for s in range(2, 7)]
        for n, (s, kk) in enumerate(xs): fill.setdefault(16 + n // 2, []).append(xread(s, kk))
        cuts = {16 * s - 2: 16 * (s + 1) for s in range(1, 7)}
        cuts[110] = 112
        def cvtT(T):
            base = (176 + 8 * T) if T < 2 else (208 + 8 * (T - 2))
            return [lambda i=i, base=base, T=T: e(f"v_cvt_pk_bf16_f32 v{base+i}, v{16*T+2*i}, v{16*T+2*i+1}") for i in range(8)]
        c0 = cvtT(0); c1 = cvtT(1)
        for i in range(8): fill.setdefault(104 + i // 3, []).append(c0[i])
        for i in range(8): fill.setdefault(108 + i // 3, []).append(c1[i])
        for i in range(64): fill.setdefault(66 + i // 2, []).append(lambda i=i: e(f"v_mov_b32 v{64+i}, 0"))
        def qxaddr():
            e.raw("s_lshl_b32 s47, s29, 14"); e.raw(f"s_add_u32 s47, s47, {SLOT_WQ[6]*S}"); e.raw("s_lshl_b32 s48, s30, 11"); e.raw("s_add_u32 s48, s48, s47")
            e(f"v_add_u32 v195, s48, v{lane16}")
            e(f"v_add_u32 v{t0}, s47, v{lane16}")
        fill.setdefault(100, []).append(qxaddr)
        pipeline(items, [0, 1, 2, 3, 4, 5], cuts, 16, fill, on_cut=xcut)
        for T in range(2):
            for h in range(2): e(f"ds_write_b128 v195, {v4(176+8*T+4*h)} offset:{(4*T+h)*1024}")
        for f in cvtT(2): f()
        for h in range(2): e(f"ds_write_b128 v195, {v4(208+4*h)} offset:{(8+h)*1024}")
        for f in cvtT(3): f()
        for h in range(2): e(f"ds_write_b128 v195, {v4(216+4*h)} offset:{(12+h)*1024}")
        if o.tlb: e.raw("s_waitcnt vmcnt(0)")
        e.drain(); e.raw("s_barrier")
        self.stamp(e, 3)
        korder = [4 * cb + kq for kq in range(4) for cb in range(4)]
        def kitems(Sd):
            its = []
            for n, ks in enumerate(korder):
                def rd(b, ks=ks):
                    addr(vK, (ks & 3) * 32)
                    e(f"ds_read_b128 {v4(fr(b))}, v{vK} offset:{(ks>>2)*8192}")
                def mf(b, ks=ks, n=n):
                    e(f"{MF} {v16(Sd)}, {v4(fr(b))}, {v4(Q+4*ks)}, {'0' if n == 0 else v16(Sd)}")
                its.append((rd, mf))
            return its
        its = kitems(S0)
        for ks in korder[:4]: e(f"ds_read_b128 {v4(Q+4*ks)}, v{t0} offset:{ks*1024}")
        fill = {}
        for n, ks in enumerate(korder[4:]):
            fill.setdefault(n // 2, []).append(lambda ks=ks: e(f"ds_read_b128 {v4(Q+4*ks)}, v{t0} offset:{ks*1024}"))
        for i in range(64): fill.setdefault(i // 4, []).append(lambda i=i: e(f"v_mov_b32 v{i}, 0"))
        pipeline(its, [0, 1, 2, 3, 4, 5], {}, 16, fill)
        addr(vK, 0)
        e(f"v_add_u32 v{vK}, {((slotK(1)-slotK(0))*S) & 0xffffffff}, v{vK}")
        for i in range(8): e(f"v_mov_b32 v{fr(4)+i}, 0")
        for i in range(4): e(f"v_mov_b32 v{S1+4+i}, 0")
        e(f"v_mov_b32 v{vl}, 0")
        def maxtree(Sx):
            ops = [lambda: e(f"v_max3_f32 v{mx}, v{Sx}, v{Sx+1}, v{Sx+2}")]
            for i in range(3, 15, 2): ops.append(lambda i=i: e(f"v_max3_f32 v{mx}, v{mx}, v{Sx+i}, v{Sx+i+1}"))
            ops.append(lambda: e(f"v_max_f32 v{mx}, v{mx}, v{Sx+15}"))
            return ops
        for f in maxtree(S0): f()
        e(f"v_mov_b32 v{t0}, v{mx}"); e.raw("s_nop 1"); e(f"v_permlane32_swap_b32 v{mx}, v{t0}"); e.raw("s_nop 0")
        e(f"v_max_f32 v{mx}, v{mx}, v{t0}")
        e(f"v_mul_f32 v{negm}, s38, v{mx}"); e(f"v_sub_f32 v{negm}, 0, v{negm}")
        for i in range(16): e(f"v_fma_f32 v{S0+i}, v{S0+i}, s38, v{negm}")
        e(f"v_mov_b32 v{mx}, 0")
        e.raw("s_mov_b32 s49, 0")
        self.segs.append(("pre", list(e.L)))

        def vitems(Sp):
            its = []
            for kk in range(2):
                for bp in ((0, 1) if kk == 0 else (1, 0)):
                    for cb in range(4):
                        tp = 4 * bp + cb
                        def rd(b, kk=kk, bp=bp, cb=cb):
                            addr(vV, bp * 64)
                            e(f"ds_read_b64_tr_b16 v[{fr(b)}:{fr(b)+1}], v{vV} offset:{cb*8192+kk*2048}")
                            e(f"ds_read_b64_tr_b16 v[{fr(b)+2}:{fr(b)+3}], v{vV} offset:{cb*8192+kk*2048+1024}")
                        def mf(b, kk=kk, tp=tp):
                            e(f"{MF} {v16(O+16*tp)}, {v4(fr(b))}, {v4(Sp+4*kk)}, {v16(O+16*tp)}")
                        its.append((rd, mf))
            return its
        def softmax_ops(Sc):
            ex = [lambda i=i: e(f"v_exp_f32 v{Sc+i}, v{Sc+i}") for i in range(16)]
            ad = [lambda i=i: e(f"v_add_f32 v{vl}, v{vl}, v{Sc+i}") for i in range(16)]
            cv = [lambda j=j: e(f"v_cvt_pk_bf16_f32 v{Sc+j}, v{Sc+2*j}, v{Sc+2*j+1}") for j in range(8)]
            return ex, ad, cv
        def check(par):
            def f():
                e(f"v_cmp_lt_f32 vcc, s39, v{mx}")
                e.raw(f"s_cbranch_vccnz L_rare{par}")
                e.label(f"L_back{par}")
            return f
        def advance(reg, smask):
            return [lambda: e.raw(f"s_bitcmp1_b32 s{smask}, 0"), lambda: e.raw("s_cselect_b32 s47, s41, s40"), lambda: e.raw(f"s_lshr_b32 s{smask}, s{smask}, 1"),
                    lambda: (addr(reg, 0), e(f"v_add_u32 v{reg}, s47, v{reg}"))]
        def step(par, tag):
            Sc, Sn = (S0, S1) if par == 0 else (S1, S0)
            cyc = [0, 1, 2, 3, 4, 5] if par == 0 else [4, 5, 2, 3, 0, 1]
            prev = vitems(Sn)
            pend = [lambda: prev[14][1](cyc[4]), lambda: prev[15][1](cyc[5])]
            its = kitems(Sn) + vitems(Sc)
            ex, ad, cv = softmax_ops(Sc)
            fill = {}
            eg = o.expgaps
            for i in range(16):
                fill.setdefault(eg[i] + 1, []).append(ad[i])
            for i in range(16):
                fill.setdefault(eg[i], []).append(ex[i])
            for j in range(8): fill.setdefault(eg[2 * j + 1] + 1, []).append(cv[j])
            for k, f in enumerate(advance(vK, 42)): fill.setdefault(o.advK + k // 2, []).append(f)
            mt = maxtree(Sn)
            fm = [lambda i=i: e(f"v_fma_f32 v{Sn+i}, v{Sn+i}, s38, v{negm}") for i in range(16)]
            ops = fm[:3] + [mt[0]]
            for k in range(6): ops += fm[3 + 2 * k: 5 + 2 * k] + [mt[1 + k]]
            ops += [fm[15], mt[7]]
            for f, g in zip(ops, o.fmagaps): fill.setdefault(g, []).append(f)
            for k, f in enumerate(advance(vV, 43)): fill.setdefault(26 + k, []).append(f)
            e.raw("s_barrier")
            pipeline(its, cyc, {}, 32, fill, pending=pend, tail_pending=2, after_pending=check(tag))
            if o.fused: self.flag_mark_site(e, tag)
            e.drain()
        e.raw(".p2align 3")
        e.label("L_loop")
        m0 = len(e.L)
        step(0, "A")
        e.raw("s_cmp_eq_u32 s49, 7"); e.raw("s_cbranch_scc1 L_tail")
        m1 = len(e.L)
        step(1, "B")
        e.raw("s_add_u32 s49, s49, 1"); e.raw("s_branch L_loop")
        m2 = len(e.L)
        A_, B_ = e.L[m0:m1], e.L[m1:m2]
        self.segs.append(("pre+A", self.segs[0][1][-40:] + A_))
        self.segs.append(("A+B+A", A_ + B_ + A_))
        def rare(tag, Sc):
            e.label(f"L_rare{tag}")
            k = len(e.L)
            e(f"v_mov_b32 v{t0}, v{mx}"); e.raw("s_nop 1"); e(f"v_permlane32_swap_b32 v{mx}, v{t0}"); e.raw("s_nop 0")
            e(f"v_max3_f32 v{t0}, v{mx}, v{t0}, 0")
            e(f"v_sub_f32 v{negm}, v{negm}, v{t0}")
            e(f"v_exp_f32 v{t1}, -v{t0}")
            for i in range(16): e(f"v_sub_f32 v{Sc+i}, v{Sc+i}, v{t0}")
            e(f"v_mul_f32 v{vl}, v{vl}, v{t1}")
            for i in range(128): e(f"v_mul_f32 v{i}, v{i}, v{t1}")
            e.raw("s_nop 1")
            e.raw(f"s_branch L_back{tag}")
            self.segs.append((f"rare{tag}", [f"{MF} {v16(48)}, {v4(fr(0))}, {v4(S0)}, {v16(48)}", "s_nop 0", "s_nop 0"] + e.L[k:]))
        rare("A", S0); rare("B", S1); rare("C", S1)
        if o.fused: self.flag_mark_code(e, "A"); self.flag_mark_code(e, "B")

        e.raw(".p2align 3")
        e.label("L_tail")
        m3 = len(e.L)
        self.stamp(e, 4)
        e(f"v_add_u32 v{vV}, {((slotV(15) - slotV(14) - 2)*S) & 0xffffffff}, v{vV}")
        e(f"v_mbcnt_lo_u32_b32 v{vK}, -1, 0"); e(f"v_mbcnt_hi_u32_b32 v{vK}, -1, v{vK}"); e(f"v_lshlrev_b32 v{vK}, 4, v{vK}")
        e.raw(f"s_mul_i32 s47, s30, {(OXB-OXA)*S}"); e.raw("s_lshl_b32 s48, s29, 14")
        e.raw(f"s_add_u32 s50, s48, {OXA*S}"); e.raw("s_add_u32 s50, s50, s47")
        e.raw(f"s_add_u32 s51, s48, {OXB*S}"); e.raw("s_sub_u32 s51, s51, s47")
        Sc, Sn = S1, S0
        cyc = [4, 5, 2, 3, 0, 1]
        prev = vitems(Sn)
        pend = [lambda: prev[14][1](cyc[4]), lambda: prev[15][1](cyc[5])]
        its = vitems(Sc)
        ex, ad, cv = softmax_ops(Sc)
        def first_half():
            check("C")()
            for i in range(8):
                ex[i]()
                if i: ad[i - 1]()
                if i >= 2 and i % 2 == 0: cv[i // 2 - 1]()
            ex[8](); ad[7](); cv[3]()
            e.raw("s_nop 0")
            ex[9]()
        fill = {}
        fill[0] = [ad[8], ex[10], ad[9]]
        fill[1] = [cv[4], ex[11], ad[10]]
        fill[2] = [ex[12], ad[11], cv[5]]
        fill[3] = [ex[13], ad[12]]
        fill[4] = [ex[14], ad[13], cv[6]]
        fill[5] = [ex[15], ad[14]]
        vown, vpar, sa = 192, 193, 194
        fill[6] = [ad[15], cv[7], lambda: e(f"v_mov_b32 v{t0}, v{vl}"), lambda: e(f"v_add_u32 v{vpar}, s51, v{vK}"), lambda: e(f"v_add_u32 v{vown}, s50, v{vK}")]
        fill[7] = [lambda: e(f"v_permlane32_swap_b32 v{vl}, v{t0}"), lambda: e.raw("s_nop 0"), lambda: e(f"v_add_f32 v{vl}, v{vl}, v{t0}"),
                   lambda: e(f"ds_write_b64 v{vpar}, v[{negm}:{vl}]")]
        def stats_read(i):
            e(f"ds_read_b64 v[196:197], v{vown}")
        fill[12] = [lambda: e(f"v_min_f32 v198, v{negm}, v196"), lambda: e(f"v_sub_f32 v199, v198, v{negm}"), lambda: e(f"v_sub_f32 v200, v198, v196"),
                    lambda: e("v_exp_f32 v199, v199")]
        fill[13] = [lambda: e("v_exp_f32 v200, v200"), lambda: e(f"v_mul_f32 v201, v{vl}, v199"), lambda: e("v_fma_f32 v201, v197, v200, v201"), lambda: e("v_rcp_f32 v201, v201")]
        fill[14] = [lambda: e(f"v_mul_f32 v{sa}, v199, v201")]
        e.raw("s_barrier")
        pipeline(its, cyc, {10: 16}, 16, fill, pending=pend, after_pending=first_half, on_cut=stats_read)
        for tp in (4, 5, 6, 7):
            for i in range(0, 16, 2):
                r = 16 * tp + i
                e(f"v_pk_mul_f32 v[{r}:{r+1}], v[{r}:{r+1}], v[{sa}:{sa+1}] op_sel_hi:[1,0]")
            for q in range(4):
                e(f"ds_write_b128 v{vown}, {v4(16*tp+4*q)} offset:{((tp-4)*4+q)*1024}")
        e.drain(); e.raw("s_barrier")
        self.stamp(e, 5)
        for n in range(16): e(f"ds_read_b128 {v4(Q+4*n)}, v{vpar} offset:{n*1024}")
        for n in range(8):
            for i in range(0, 8, 2):
                r = 8 * n + i
                e(f"v_pk_fma_f32 v[{r}:{r+1}], v[{r}:{r+1}], v[{sa}:{sa+1}], v[{Q+r}:{Q+r+1}] op_sel_hi:[1,0,1]")
            for i in range(4): e(f"v_cvt_pk_bf16_f32 v{64+4*n+i}, v{8*n+2*i}, v{8*n+2*i+1}")
            e(f"ds_write_b128 v{vpar}, {v4(64+4*n)} offset:{n*1024}")
        e(f"v_mov_b32 v{t0}, v{vown}")
        if o.fused:
            e.raw(f"v_bfe_u32 v{mx}, v{vK}, 4, 4"); e.raw(f"v_add_u32 v{mx}, s68, v{mx}"); e.raw(f"global_load_ubyte v{t1}, v{mx}, s[16:17] sc0 sc1")
        if o.oprio: e.raw(f"s_setprio {o.oprio}")
        e.drain(); e.raw("s_barrier")
        self.stamp(e, 6)
        items = []
        for s in range(7):
            acc = S0 if s % 2 == 0 else S1
            for n in range(16):
                f = n if s % 2 == 0 else (n + 8) % 16
                def rd(b, s=s, n=n, f=f):
                    if n == 0 and s > 0:
                        e(f"v_add_u32 v{vWO}, {((SLOT_WO[s]-SLOT_WO[s-1])*S) & 0xffffffff}, v{vWO}")
                    addr(vWO, (f >> 3) * 4096)
                    off = ((f & 7) >> 1) * 8192 + (f & 1) * 2048
                    e(f"ds_read_b64_tr_b16 v[{fr(b)}:{fr(b)+1}], v{vWO} offset:{off}")
                    e(f"ds_read_b64_tr_b16 v[{fr(b)+2}:{fr(b)+3}], v{vWO} offset:{off+1024}")
                def mf(b, acc=acc, n=n, f=f):
                    e(f"{MF} {v16(acc)}, {v4(fr(b))}, {v4(64+4*f)}, {'0' if n == 0 else v16(acc)}")
                items.append((rd, mf))
        def store_ops(s):
            acc = S0 if s % 2 == 0 else S1
            pk = 8 * (s % 2)
            ops = [lambda i=i: e(f"v_cvt_pk_bf16_f32 v{pk+i}, v{acc+2*i}, v{acc+2*i+1}") for i in range(8)]
            def st():
                e.raw("s_add_u32 s47, s45, s46"); e.raw("s_add_u32 s48, s47, 0x4000")
                e(f"buffer_store_dwordx4 {v4(pk)}, v{vK}, s[32:35], s47 offen {o.stpol}")
                e(f"buffer_store_dwordx4 {v4(pk+4)}, v{vK}, s[32:35], s48 offen {o.stpol}")
                e.raw("s_add_u32 s46, s46, 0x20000"); e.raw(f"s_cmp_ge_u32 s46, {7<<17}"); e.raw("s_cselect_b32 s46, 0, s46")
            return ops + [st]
        fill = {}
        for n in range(8): fill.setdefault(n // 2, []).append(lambda n=n: e(f"ds_read_b128 {v4(96+4*n)}, v{t0} offset:{n*1024}"))
        for s in range(6):
            for k, f in enumerate(store_ops(s)): fill.setdefault(16 * (s + 1) + 4 + k // 2, []).append(f)
        cuts = {16 * s - 2: 16 * (s + 1) for s in range(1, 7)}
        pipeline(items, [0, 1, 2, 3, 4, 5], cuts, 16, fill)
        e.raw("s_nop 7"); e.raw("s_nop 3")
        for f in store_ops(6): f()
        if not o.fused: self.stamp(e, 7)
        if o.fused: self.fused_reduce(e, vK)
        self.segs.append(("A+tail", A_ + e.L[m3:]))
        if o.amp:
            for l in ["s_memrealtime s[72:73]", "s_waitcnt lgkmcnt(0)", "s_sub_u32 s74, s72, s70", f"s_mul_i32 s74, s74, {o.amp}", "s_add_u32 s74, s74, s72", "s_mov_b32 s75, 0",
               "L_spin:", "s_memrealtime s[76:77]", "s_waitcnt lgkmcnt(0)", "s_add_u32 s75, s75, 1", "s_cmp_gt_u32 s75, 2000000", "s_cbranch_scc1 L_end",
               "s_sub_u32 s78, s76, s74", "s_cmp_lt_i32 s78, 0", "s_cbranch_scc1 L_spin"]: e.raw(l)
        if self.ts:
            e.raw("s_cmp_lg_u32 s26, 0"); e.raw("s_cbranch_scc1 L_end")
            self.stamp_store(e, 8, 0)

    def sum16(self, e, base, pol, srd_in, srd_out, s_img, v16l, vrow, extra=None):
        e.raw(f"s_lshl_b32 s57, s{s_img}, 14")
        for h in range(16):
            if h % 4 == 0 and h: e.raw("s_add_u32 s57, s57, 0x1000")
            e.raw(f"buffer_load_dwordx4 v[{base+16+4*h}:{base+19+4*h}], v{v16l}, s[{srd_in}:{srd_in+3}], s57 offen offset:{(h&3)*1024} {pol}")
        if extra: e.raw(extra)
        e.raw(f"s_mov_b32 s58, {(2**32 + 55)//56}"); e.raw(f"s_mul_hi_u32 s59, s{s_img}, s58"); e.raw("s_mul_i32 s60, s59, 56"); e.raw(f"s_sub_u32 s60, s{s_img}, s60")
        e.raw("s_lshl_b32 s61, s59, 6"); e.raw("s_bfe_u32 s62, s60, 0x10001"); e.raw("s_lshl_b32 s62, s62, 5"); e.raw("s_add_u32 s61, s61, s62"); e.raw("s_mul_i32 s61, s61, 896")
        e.raw("s_lshr_b32 s62, s60, 3"); e.raw("s_lshl_b32 s62, s62, 7"); e.raw("s_add_u32 s61, s61, s62")
        e.raw("s_bfe_u32 s62, s60, 0x10002"); e.raw("s_lshl_b32 s62, s62, 6"); e.raw("s_add_u32 s61, s61, s62")
        e.raw("s_and_b32 s62, s60, 1"); e.raw("s_lshl_b32 s62, s62, 5"); e.raw("s_add_u32 s61, s61, s62")
        e.raw("s_mov_b32 s63, 0xffff0000")
        for h in range(16):
            e.raw(f"s_waitcnt vmcnt({15-h+(1 if extra else 0)})")
            for i in range(4):
                r = base + 16 + 4 * h + i
                if h == 0:
                    e.raw(f"v_lshlrev_b32 v{base+8+2*i}, 16, v{r}"); e.raw(f"v_and_b32 v{base+9+2*i}, s63, v{r}")
                else:
                    e.raw(f"v_lshlrev_b32 v{base+5}, 16, v{r}"); e.raw(f"v_and_b32 v{base+6}, s63, v{r}")
                    e.raw(f"v_add_f32 v{base+8+2*i}, v{base+8+2*i}, v{base+5}"); e.raw(f"v_add_f32 v{base+9+2*i}, v{base+9+2*i}, v{base+6}")
        for i in range(4): e.raw(f"v_cvt_pk_bf16_f32 v{base+16+i}, v{base+8+2*i}, v{base+9+2*i}")
        e.raw(f"buffer_store_dwordx4 v[{base+16}:{base+19}], v{vrow}, s[{srd_out}:{srd_out+3}], s61 offen")

    def flag_init(self, e):
        e.raw("s_lshl_b32 s68, s25, 4")
        e.raw("s_lshl_b32 s69, s25, 9"); e.raw(f"s_add_u32 s69, s69, {FLAG_OFF}")
        e.raw("s_lshl_b32 s57, s23, 2"); e.raw("s_add_u32 s57, s57, s69")
        e.raw("v_lshl_add_u32 v196, v0, 7, s57"); e.raw("v_mov_b32 v197, 0")
        e.raw("s_lshl_b32 s57, s26, 7"); e.raw("s_add_u32 s69, s69, s57")
        e.raw("s_cmp_lg_u32 s26, 0"); e.raw("s_cbranch_scc1 L_noclr")
        e.raw("s_mov_b64 exec, 15")
        e.raw("global_store_dword v196, v197, s[18:19] sc0 sc1")
        e.raw("s_mov_b64 exec, -1")
        e.label("L_noclr")
    def flag_mark_setup(self, e):
        e.raw("s_min_u32 s57, s23, 14"); e.raw("s_lshr_b32 s58, s57, 1")
        e.raw("s_cmp_lg_u32 s26, 0"); e.raw("s_cselect_b32 s58, 99, s58")
        e.raw("s_bitcmp1_b32 s57, 0"); e.raw("s_cselect_b32 s86, 99, s58"); e.raw("s_cselect_b32 s87, s58, 99")
        e.raw("s_add_u32 s88, s68, s23")
    def flag_mark_site(self, e, tag):
        e.raw(f"s_cmp_eq_u32 s49, s{86 if tag == 'A' else 87}"); e.raw(f"s_cbranch_scc1 L_mark{tag}")
        e.label(f"L_marked{tag}")
    def flag_mark_code(self, e, tag):
        e.label(f"L_mark{tag}")
        e.raw("v_mov_b32 v253, s88"); e.raw("v_mov_b32 v254, 1")
        e.raw("s_waitcnt vmcnt(0)")
        e.raw("s_mov_b64 exec, 1")
        e.raw("global_store_byte v253, v254, s[16:17] sc0 sc1")
        e.raw("s_mov_b64 exec, -1")
        e.raw(f"s_branch L_marked{tag}")

    def fused_reduce(self, e, v16l):
        o = self.o
        DBG = "global_load_ubyte v27, v252, s[16:17] sc0 sc1"
        e.raw(f"v_lshrrev_b32 v20, 4, v{v16l}")
        e.raw("v_and_b32 v21, 31, v20"); e.raw("v_mul_u32_u24 v21, 896, v21"); e.raw("v_lshrrev_b32 v22, 5, v20"); e.raw("v_lshl_add_u32 v21, v22, 4, v21")
        e.raw("v_and_b32 v22, 15, v20"); e.raw("v_lshl_add_u32 v22, v22, 2, s69")
        e.raw("s_lshl_b32 s57, s23, 2"); e.raw("s_add_u32 s57, s57, s69")
        e.raw("v_mov_b32 v23, s57"); e.raw("v_mov_b32 v24, 1")
        e.raw("s_lshl_b32 s65, 1, s23"); e.raw("s_and_b32 s65, s65, 0x3fff")
        e.raw("s_mul_i32 s64, s25, 56"); e.raw("s_lshl_b32 s58, s26, 1"); e.raw("s_add_u32 s64, s64, s58")
        e.raw("s_lshl_b32 s56, 16, s26")
        e.raw("s_mov_b32 s59, 0"); e.raw("s_mov_b32 s67, 0")
        e.raw("s_waitcnt vmcnt(0)")
        self.stamp(e, 6)
        e.raw("s_mov_b64 exec, 1")
        e.raw("global_store_dword v23, v24, s[18:19] sc0 sc1")
        e.raw("s_mov_b64 exec, -1")
        e.raw("v_mov_b32 v27, v254")
        e.raw("s_cmp_lg_u32 s65, 0"); e.raw("s_cbranch_scc1 L_chk")
        e.raw("s_waitcnt vmcnt(0)")
        e.raw(DBG)
        e.raw("s_waitcnt vmcnt(0)")
        e.raw("v_and_b32 v25, s56, v27"); e.raw("v_cmp_ne_u32 vcc, 0, v25")
        e.raw("s_cbranch_vccz L_done")
        e.label("L_chk")
        e.raw("v_cmp_eq_u32 vcc, 0, v27")
        e.raw("s_cbranch_vccz L_poll")
        e.raw("s_sleep 8")
        e.raw(DBG)
        e.raw("s_add_u32 s59, s59, 1")
        e.raw("s_waitcnt vmcnt(0)")
        e.raw(f"s_cmp_lt_u32 s59, {o.spinmax}"); e.raw("s_cbranch_scc1 L_chk")
        e.raw("s_branch L_giveup")
        e.label("L_poll")
        e.raw("global_load_dword v25, v22, s[18:19] sc0 sc1")
        e.raw("s_add_u32 s59, s59, 1")
        e.raw("s_waitcnt vmcnt(0)")
        e.raw("v_cmp_eq_u32 vcc, 0, v25")
        e.raw("s_cbranch_vccz L_go")
        if o.sleep: e.raw(f"s_sleep {o.sleep}")
        e.raw(f"s_cmp_lt_u32 s59, {o.spinmax}"); e.raw("s_cbranch_scc1 L_poll")
        e.label("L_giveup")
        e.raw("s_cmp_eq_u32 s65, 0"); e.raw("s_cbranch_scc1 L_done")
        e.raw("s_and_b32 s60, s23, 3"); e.raw("s_lshl_b32 s60, s60, 3"); e.raw("s_lshl_b32 s60, s56, s60"); e.raw("v_mov_b32 v24, s60")
        e.raw("s_and_b32 s60, s23, 12"); e.raw("s_add_u32 s60, s60, s68"); e.raw("v_mov_b32 v26, s60")
        e.raw("s_mov_b64 exec, 1")
        e.raw("global_atomic_or v26, v24, s[16:17] sc1")
        e.raw("s_mov_b64 exec, -1")
        e.raw("s_waitcnt vmcnt(0)")
        e.raw(DBG)
        e.raw("s_waitcnt vmcnt(0)")
        e.raw("global_load_dword v25, v22, s[18:19] sc0 sc1")
        e.raw("s_waitcnt vmcnt(0)")
        e.raw("v_min_u32 v25, v25, v27")
        e.raw("v_cmp_eq_u32 vcc, 0, v25")
        e.raw("s_cbranch_vccnz L_done")
        e.label("L_go")
        self.stamp(e, 5)
        e.raw("s_cmp_lg_u32 s65, 0"); e.raw("s_cbranch_scc1 L_slices")
        e.raw(DBG)
        e.raw("s_waitcnt vmcnt(0)")
        e.raw("s_branch L_more")
        e.label("L_slices")
        e.raw("s_ff1_i32_b32 s66, s65"); e.raw("s_bitset0_b32 s65, s66"); e.raw("s_bitset1_b32 s67, s66")
        e.raw("s_lshr_b32 s58, s66, 1"); e.raw("s_lshl_b32 s58, s58, 3"); e.raw("s_and_b32 s66, s66, 1"); e.raw("s_add_u32 s66, s66, s58"); e.raw("s_add_u32 s66, s66, s64")
        self.sum16(e, 32, "sc1", 32, 52, 66, v16l, 21, extra=DBG)
        e.raw("s_waitcnt vmcnt(1)")
        e.label("L_more")
        e.raw("v_and_b32 v25, s56, v27"); e.raw("v_cmp_ne_u32 vcc, 0, v25")
        e.raw("s_nop 1")
        e.raw("s_and_b32 s58, vcc_lo, 0x3fff"); e.raw("s_andn2_b32 s58, s58, s67"); e.raw("s_or_b32 s65, s65, s58")
        e.raw("s_cbranch_scc1 L_slices")
        e.label("L_done")
        self.stamp(e, 7)

    def reduce_kernel(self, e):
        e.raw("s_cmp_ge_u32 s2, 224"); e.raw("s_cbranch_scc1 R_end")
        e.raw("s_load_dwordx2 s[4:5], s[0:1], 40"); e.raw("s_load_dwordx2 s[6:7], s[0:1], 56")
        e.raw("v_lshrrev_b32 v1, 6, v0"); e.raw("v_and_b32 v0, 63, v0"); e.raw("v_readfirstlane_b32 s3, v1")
        e.raw("v_lshlrev_b32 v2, 4, v0")
        e.raw("v_and_b32 v3, 31, v0"); e.raw("v_mul_u32_u24 v3, 896, v3"); e.raw("v_lshrrev_b32 v4, 5, v0"); e.raw("v_lshl_add_u32 v3, v4, 4, v3")
        e.raw("s_lshl_b32 s16, s2, 2"); e.raw("s_add_u32 s16, s16, s3")
        e.raw("s_waitcnt lgkmcnt(0)")
        e.raw("s_mov_b32 s8, s6"); e.raw("s_mov_b32 s9, s7"); e.raw(f"s_mov_b32 s10, {PART_BYTES}"); e.raw("s_mov_b32 s11, 0x20000")
        e.raw("s_mov_b32 s12, s4"); e.raw("s_mov_b32 s13, s5"); e.raw(f"s_mov_b32 s14, {1024*896}"); e.raw("s_mov_b32 s15, 0x20000")
        self.sum16(e, 0, "", 8, 12, 16, 2, 3)
        e.label("R_end"); e.raw("s_endpgm")

def kd(name, vgpr, sgpr):
    return [ '.section .rodata,"a"', ".p2align 6", f".amdhsa_kernel {name}", f"  .amdhsa_next_free_vgpr {vgpr}", f"  .amdhsa_next_free_sgpr {sgpr}",
        f"  .amdhsa_accum_offset {(vgpr+3)//4*4}", "  .amdhsa_group_segment_fixed_size 0", "  .amdhsa_kernarg_size 64", "  .amdhsa_user_sgpr_count 2",
        "  .amdhsa_user_sgpr_kernarg_segment_ptr 1", "  .amdhsa_system_sgpr_workgroup_id_x 1", ".end_amdhsa_kernel"]

def build(o):
    g = G(o)
    K1 = NAME + "_kernel"; K2 = "gqa_reduce_kernel"
    out = [f"; Fused GQA block: Q-proj + flash attention + O-proj partials + head reduction. Generated by gen/gen.py"]
    if o.fused: out += [f"; @launch grid=(256,1,1) block=(512,1,1) lds=163840"]
    else: out += [f"; @launch kernel={K1} grid=(256,1,1) block=(512,1,1) lds=163840", f"; @launch kernel={K2} grid=(224,1,1) block=(256,1,1) lds=0"]
    out += ['.amdgcn_target "amdgcn-amd-amdhsa--gfx950"', ".text", f".globl {K1}", ".p2align 8", f".type {K1},@function", f"{K1}:", "L_start:"]
    e = Em(); g.prologue(e); g.loader(e); ld = list(e.L)
    e2 = Em(); g.compute(e2)
    out += e.L + e2.L + ["L_end:", "s_endpgm", "L_code_end:"]
    errs = check_hazards(ld, "loader")
    if not o.fused:
        e3 = Em(); g.reduce_kernel(e3)
        out += [f".globl {K2}", ".p2align 8", f".type {K2},@function", f"{K2}:"] + e3.L
        errs += check_hazards(e3.L, "reduce")
    out += kd(K1, 256, 96)
    if not o.fused: out += kd(K2, 80, 72)
    for n, l in g.segs: errs += check_hazards(l, n)
    for x in dict.fromkeys(errs): print("HAZARD", x, file=sys.stderr)
    return "\n".join(out) + "\n"

def opts(argv=None):
    ap = argparse.ArgumentParser()
    ap.add_argument("-o", default="cdna_kernels/" + NAME + ".s")
    ap.add_argument("--ts", action="store_true")
    ap.add_argument("--stpol", default="sc1")
    ap.add_argument("--amp", type=int, default=0)
    ap.add_argument("--fused", type=int, default=1)
    ap.add_argument("--pairwait", type=int, default=1)
    ap.add_argument("--lookdef", type=int, default=8)
    ap.add_argument("--look", default="")
    ap.add_argument("--lag", default="0211")
    ap.add_argument("--spinmax", type=int, default=20000)
    ap.add_argument("--lstamps", default="1,2,4,6,7,9,33")
    ap.add_argument("--sleep", type=int, default=4)
    ap.add_argument("--tlb", type=int, default=0)
    ap.add_argument("--oprio", type=int, default=0)
    a = ap.parse_args(argv)
    a.lstamps = [int(x) for x in a.lstamps.split(",")]
    a.look = [tuple(map(int, x.split(":"))) for x in a.look.split(",") if x]
    a.lag = tuple(int(c) for c in a.lag)
    a.expgaps = list(range(16))
    a.advK = 17
    a.fmagaps = []
    for g in range(19, 26): a.fmagaps += [g, g]
    for g in range(26, 30): a.fmagaps += [g, g, g]
    return a

if __name__ == "__main__":
    a = opts()
    open(a.o, "w").write(build(a))
```

```python
import sys, argparse
from emit import Em, check_hazards, regs_of

NAME = "standalone__gqa_block_cached__near_ridge"
S = 32768
TS_OFF = 16 << 20
PART_BYTES = 16 * 56 * 16 * 1024
FLAG_OFF = 15 << 20

SLOT_WQ = [2, 3, 4, 2, 0, 1, 3]
def slotK(k): return 4 if k == 0 else KV_RING[(2 * k - 2) % 5]
def slotV(v): return KV_RING[(2 * 15 - 2 + 2) % 5] if v == 15 else KV_RING[(2 * v + 1) % 5]
KV_RING = [0, 1, 2, 3, 4]
SLOT_WO = [1, 2, 0, 3, 4, 1, 2]
OXA, OXB = 3, 4
NB = 34

class G:
    def __init__(self, o):
        self.o = o
        self.ts = o.ts
        self.segs = []

    def stamp(self, e, i):
        if self.ts: e.raw(f"s_memrealtime s[{70+2*i}:{71+2*i}]")
    def stamp_store(self, e, nst, which):
        if not self.ts: return
        e.raw("s_waitcnt lgkmcnt(0)")
        for i in range(2 * nst): e.raw(f"v_mov_b32 v{100+i}, s{70+i}")
        e.raw(f"s_lshl_b32 s3, s2, 8"); e.raw(f"s_add_u32 s3, s3, {TS_OFF + which*128}")
        e.raw("v_mov_b32 v99, s3")
        for i in range(0, 2 * nst, 4):
            e.raw(f"global_store_dwordx4 v99, v[{100+i}:{103+i}], s[18:19] offset:{4*i}")

    def prologue(self, e):
        e.raw("s_cmp_ge_u32 s2, 256"); e.raw("s_cbranch_scc1 L_end")
        e.raw("s_load_dwordx16 s[4:19], s[0:1], 0")
        if self.ts or self.o.amp:
            e.raw("s_memrealtime s[70:71]")
        e.raw("v_lshrrev_b32 v1, 6, v0")
        mapb = self.o.mapb
        e.raw(f"s_and_b32 s{21 if mapb else 20}, s2, 7")
        e.raw("v_readfirstlane_b32 s26, v1")
        e.raw(f"s_lshr_b32 s{20 if mapb else 21}, s2, 5")
        e.raw("s_bfe_u32 s22, s2, 0x20003")
        e.raw("s_lshr_b32 s28, s22, 1")
        e.raw("s_lshl_b32 s23, s20, 1"); e.raw("s_add_u32 s23, s23, s28")
        e.raw("s_and_b32 s24, s22, 1")
        e.raw("s_lshl_b32 s25, s21, 1"); e.raw("s_add_u32 s25, s25, s24")
        if mapb:
            e.raw("s_lshl_b32 s27, s24, 2")
            if self.o.rotb: e.raw("s_add_u32 s27, s27, s21")
            e.raw("s_sub_u32 s3, s27, 7"); e.raw("s_cmp_ge_u32 s27, 7"); e.raw("s_cselect_b32 s27, s3, s27")
        else:
            e.raw("s_mul_i32 s27, s25, 7"); e.raw("s_lshr_b32 s27, s27, 4")
        e.raw("v_and_b32 v0, 63, v0")
        e.raw("s_cmp_lt_u32 s26, 4"); e.raw("s_cbranch_scc1 L_compute")

    def code_prefetch(self, e, lo, hi, sidx):
        e.raw("s_getpc_b64 s[64:65]")
        lab = f"L_pc_{lo}"
        e.label(lab)
        e.raw(f"s_add_u32 s64, s64, {lo}-{lab}"); e.raw("s_addc_u32 s65, s65, " + ("0" if lo != "L_start" else "-1"))
        e.raw("s_lshr_b32 s66, s2, 3"); e.raw("s_lshl_b32 s66, s66, 2"); e.raw(f"s_add_u32 s66, s66, s{sidx}"); e.raw("s_lshl_b32 s66, s66, 8")
        e.raw(f"s_min_u32 s66, s66, {hi}-{lo}-256")
        e.raw("s_add_u32 s64, s64, s66"); e.raw("s_addc_u32 s65, s65, 0")
        for i in range(4): e.raw(f"s_load_dword s67, s[64:65], {64*i}")

    def loader(self, e):
        o = self.o
        VX, VWQ, VK, VV, VWO = 8, 12, 16, 20, 24
        e.raw("s_setprio 2")
        e.raw("s_sub_u32 s29, s26, 4")
        e.raw("v_lshrrev_b32 v1, 3, v0")
        e.raw("v_and_b32 v2, 7, v0")
        e.raw("v_lshrrev_b32 v3, 1, v1")
        e.raw("v_xor_b32 v4, v2, v3"); e.raw("v_lshlrev_b32 v4, 4, v4")
        e.raw("v_mul_u32_u24 v6, 896, v1")
        e.raw(f"s_mul_i32 s55, s29, {16*896}")
        e.raw(f"v_add3_u32 v{VX}, v6, v4, s55")
        e.raw("v_xor_b32 v5, 64, v4")
        e.raw(f"s_add_u32 s55, s55, {8*896-1024}")
        e.raw(f"v_add3_u32 v{VX+1}, v6, v5, s55")
        e.raw("v_lshlrev_b32 v3, 2, v3"); e.raw("v_and_b32 v3, 4, v3"); e.raw("v_xor_b32 v3, v2, v3"); e.raw("v_lshlrev_b32 v3, 4, v3")
        e.raw("s_lshl_b32 s54, s29, 7")
        e.raw(f"v_lshl_add_u32 v7, v1, 13, v3"); e.raw(f"v_add_u32 v{VWQ}, s54, v7")
        for i in range(1, 4): e.raw(f"v_add_u32 v{VWQ+i}, {i*(65536-1024)}, v{VWQ}")
        e.raw("s_lshl_b32 s52, s29, 13")
        e.raw("s_lshl_b32 s53, s29, 11")
        e.raw(f"s_mul_i32 s30, s25, {64*896}")
        e.raw("s_lshl_b32 s31, s23, 9")
        e.raw("s_lshl_b32 s62, s27, 19")
        e.raw(f"s_mov_b32 s34, {64*896}"); e.raw("s_mov_b32 s35, 0x20000")
        e.raw(f"s_sub_u32 s46, {448*8192}, s31"); e.raw("s_mov_b32 s47, 0x20000")
        e.raw("s_waitcnt lgkmcnt(0)")
        e.raw("s_add_u32 s32, s4, s30"); e.raw("s_addc_u32 s33, s5, 0")
        e.raw("s_add_u32 s44, s10, s31"); e.raw("s_addc_u32 s45, s11, 0")
        def rest_setup():
            e.raw("v_lshl_add_u32 v7, v1, 9, s54")
            for i in range(4):
                e.raw(f"v_add_u32 v{VK+i}, v7, v{4+(i&1)}"); e.raw(f"v_add_u32 v{VV+i}, v7, v3")
                if i:
                    e.raw(f"v_add_u32 v{VK+i}, {i*3072}, v{VK+i}"); e.raw(f"v_add_u32 v{VV+i}, {i*3072}, v{VV+i}")
            e.raw(f"s_mul_i32 s55, s29, {64*896}")
            e.raw(f"v_add3_u32 v{VWO}, v6, v3, s55")
            for i in range(1, 4): e.raw(f"v_add_u32 v{VWO+i}, {i*(8*896-1024)}, v{VWO}")
            e.raw("s_lshl_b32 s30, s21, 3"); e.raw("s_add_u32 s30, s30, s20"); e.raw("s_lshl_b32 s30, s30, 19")
            e.raw("s_add_u32 s36, s6, s30"); e.raw("s_addc_u32 s37, s7, 0"); e.raw("s_mov_b32 s38, 0x80000"); e.raw("s_mov_b32 s39, 0x20000")
            e.raw("s_add_u32 s40, s8, s30"); e.raw("s_addc_u32 s41, s9, 0"); e.raw("s_mov_b32 s42, 0x80000"); e.raw("s_mov_b32 s43, 0x20000")
            e.raw(f"s_mul_i32 s30, s23, {256*896}")
            e.raw("s_add_u32 s48, s12, s30"); e.raw("s_addc_u32 s49, s13, 0"); e.raw(f"s_mov_b32 s50, {256*896}"); e.raw("s_mov_b32 s51, 0x20000")
            e.raw("s_lshl_b32 s63, s27, 7")
            e.raw("s_lshl_b32 s68, s22, 2"); e.raw("s_add_u32 s68, s68, s29"); e.raw("s_lshl_b32 s68, s68, 11")
            e.raw("s_lshl_b32 s69, s25, 2"); e.raw("s_add_u32 s69, s69, s29"); e.raw("s_mul_i32 s69, s69, 3584")
            packed = sum(o.lag[u] << (4 * u) for u in range(4))
            for r in range(4):
                e.raw(f"s_sub_u32 s30, {r+4}, s22"); e.raw("s_and_b32 s30, s30, 3"); e.raw("s_lshl_b32 s30, s30, 2")
                e.raw(f"s_lshr_b32 s30, {packed}, s30"); e.raw("s_and_b32 s30, s30, 15"); e.raw("s_lshl_b32 s30, s30, 15")
                e.raw(f"s_sub_u32 s{56+r}, 0, s30")
        pieces = []
        def half(t, i, slot, hf):
            def f():
                e.raw(f"s_add_u32 m0, s52, {slot*S + hf*4096}")
                step = {"WQ": 32 * 8192, "K": 16384, "V": 16384, "WO": 32 * 896}[t]
                if hf == 0:
                    if t == "WQ":
                        e.raw("s_mov_b32 s60, s62"); e.raw("s_add_u32 s62, s62, 0x80000"); e.raw(f"s_cmp_ge_u32 s62, {7<<19}"); e.raw("s_cselect_b32 s62, 0, s62")
                    elif t == "WO":
                        e.raw("s_mov_b32 s60, s63"); e.raw("s_add_u32 s63, s63, 128"); e.raw("s_cmp_ge_u32 s63, 896"); e.raw("s_cselect_b32 s63, 0, s63")
                    else:
                        e.raw(f"s_add_u32 s60, s{56+(i&3)}, {i*S}"); e.raw("s_and_b32 s60, s60, 0x7ffff")
                else:
                    e.raw(f"s_add_u32 s60, s60, {step}")
                vb, srd = {"WQ": (VWQ, 44), "K": (VK, 36), "V": (VV, 40), "WO": (VWO, 48)}[t]
                for k in range(4):
                    e.raw(f"buffer_load_dwordx4 v{vb+k}, s[{srd}:{srd+3}], s60 offen offset:{k*1024} lds")
            return f
        def unit(t, i, slot, av):
            pieces.append(((t, i, 0), 4, av, half(t, i, slot, 0)))
            pieces.append(((t, i), 4, av, half(t, i, slot, 1)))
        def xpiece(k):
            def f():
                if k == 0:
                    e.raw("s_mov_b32 m0, s53"); e.raw("s_lshl_b32 s61, s27, 7")
                else:
                    if o.mapb:
                        if k == 1:
                            e.raw("s_mul_i32 s88, s23, 3"); e.raw("s_lshr_b32 s88, s88, 3")
                        e.raw("s_add_u32 s30, s88, 1"); e.raw("s_cmp_eq_u32 s30, 6"); e.raw("s_cselect_b32 s88, 0, s30")
                    else:
                        e.raw("s_cmp_eq_u32 s28, 0"); e.raw(f"s_cselect_b32 s30, {k}, {7-k}")
                    e.raw("s_add_u32 s61, s30, s27"); e.raw("s_lshl_b32 s30, s30, 13"); e.raw("s_add_u32 m0, s30, s53")
                    e.raw("s_sub_u32 s31, s61, 7"); e.raw("s_cmp_ge_u32 s61, 7"); e.raw("s_cselect_b32 s61, s31, s61"); e.raw("s_lshl_b32 s61, s61, 7")
                for i in range(2):
                    e.raw(f"buffer_load_dwordx4 v{VX+i}, s[32:35], s61 offen offset:{i*1024} lds")
            return f
        pieces.append((("X", 0), 2, -1, xpiece(0)))
        unit("WQ", 0, SLOT_WQ[0], -1)
        for k in range(1, 7): pieces.append((("X", k), 2, -1, xpiece(k)))
        avWQ = [-1, -1, -1, 1, 2, 2, 2]
        for i in range(1, 7): unit("WQ", i, SLOT_WQ[i], avWQ[i])
        unit("K", 0, slotK(0), 3)
        unit("K", 1, slotK(1), 5); unit("V", 0, slotV(0), 6); unit("K", 2, slotK(2), 4)
        for t in range(13):
            unit("V", t + 1, slotV(t + 1), 9 + t); unit("K", t + 3, slotK(t + 3), 9 + t)
        unit("V", 14, slotV(14), 9 + 13); unit("V", 15, slotV(15), 9 + 13)
        avWO = [9 + 14, 9 + 14, 25, 28, 28, 28, 29]
        for i in range(7): unit("WO", i, SLOT_WO[i], avWO[i])
        need = {0: ("WQ", 0), 8: ("K", 0)}
        for i in range(1, 7): need[i] = ("WQ", i)
        for t in range(16): need[9 + t] = ("V", t)
        for i in range(7): need[27 + i] = ("WO", i)
        names = [p[0] for p in pieces]
        endpos = []; c = 0
        for p in pieces: c += p[1]; endpos.append(c)
        nxt = 0; needpos = 0; waited = 0
        sq = []
        for spec in o.spf:
            t, i, b0 = spec
            if t == "WO": sq += [(b0, f"s_buffer_load_dword s67, s[48:51], s69 offset:{64*k}") for k in range(56)]
            else: sq += [(b0, f"s_buffer_load_dword s67, s[{36 if t == 'K' else 40}:{39 if t == 'K' else 43}], s68 offset:{i*S + 64*k}") for k in range(32)]
        def spf(b, n):
            while n and sq and sq[0][0] < b and nxt >= o.setup_at:
                e.raw(sq.pop(0)[1]); n -= 1
        look = dict(o.look)
        for b in range(NB):
            if b in need: needpos = endpos[names.index(need[b])]
            target = needpos + look.get(b, o.lookdef)
            while nxt < len(pieces) and pieces[nxt][2] < b and (endpos[nxt - 1] if nxt else 0) < target:
                pieces[nxt][3]()
                nxt += 1
                if nxt == 3:
                    self.code_prefetch(e, "L_start", "L_code_end", 29)
                if nxt == o.setup_at: rest_setup()
                spf(b, o.spr)
            spf(b, o.spb)
            issued = endpos[nxt - 1]
            assert issued >= needpos, (b, issued, needpos)
            if needpos > waited:
                e.raw(f"s_waitcnt vmcnt({issued - needpos})"); waited = needpos
            e.raw("s_barrier")
            if b in o.lstamps: self.stamp(e, 1 + o.lstamps.index(b))
            if b == 9 + 11: self.code_prefetch(e, "L_tail", "L_code_end", 29)
        assert nxt == len(pieces)
        if sq: print("WARNING: scalar prefetch ops left:", len(sq), file=sys.stderr)
        if self.ts:
            e.raw("s_cmp_lg_u32 s26, 4"); e.raw("s_cbranch_scc1 L_end")
            self.stamp_store(e, 8, 1)
        e.raw("s_endpgm")

    def compute(self, e):
        o = self.o
        O, Q, S0, S1, FR = 0, 128, 192, 208, 224
        vK, vV, negm, vl, mx, t0, t1, vWO = 248, 249, 250, 251, 252, 253, 254, 255
        vX, vWQ, lane16 = 192, 193, 194
        fr = lambda b: FR + 4 * b
        v4 = lambda r: f"v[{r}:{r+3}]"
        v16 = lambda r: f"v[{r}:{r+15}]"
        MF = "v_mfma_f32_32x32x16_bf16"
        e.label("L_compute")
        e.raw("s_and_b32 s29, s26, 1")
        e.raw("s_lshr_b32 s30, s26, 1")
        e("v_and_b32 v200, 31, v0"); e("v_lshrrev_b32 v201, 5, v0"); e("v_bfe_u32 v202, v0, 2, 2"); e("v_bfe_u32 v204, v0, 4, 1")
        e("v_and_b32 v206, 1, v0"); e("v_bfe_u32 v207, v0, 1, 1")
        e(f"v_lshlrev_b32 v{lane16}, 4, v0")
        e("v_bfe_u32 v205, v200, 1, 3"); e("v_xor_b32 v205, v205, v201"); e("v_lshlrev_b32 v205, 4, v205"); e("v_lshl_add_u32 v205, v200, 7, v205")
        e.raw("s_lshl_b32 s31, s29, 12"); e(f"v_add_u32 v{vX}, s31, v205")
        e.raw("s_lshl_b32 s31, s30, 12")
        e.raw(f"s_add_u32 s36, s31, {slotK(0)*S}"); e(f"v_add_u32 v{vK}, s36, v205")
        e("v_lshrrev_b32 v208, 1, v202"); e("v_xor_b32 v208, s30, v208"); e("v_lshlrev_b32 v208, 2, v208"); e("v_lshl_add_u32 v208, v204, 1, v208")
        e("v_add_u32 v209, v208, v206"); e("v_lshlrev_b32 v209, 4, v209"); e("v_lshl_add_u32 v209, v207, 3, v209")
        e("v_add_u32 v210, v208, v207"); e("v_lshlrev_b32 v210, 4, v210"); e("v_lshl_add_u32 v210, v206, 3, v210")
        e("v_lshl_add_u32 v213, v201, 3, v202"); e(f"v_lshl_add_u32 v{vWQ}, v213, 7, v209"); e(f"v_add_u32 v{vWQ}, {SLOT_WQ[0]*S}, v{vWQ}")
        e("v_lshl_add_u32 v213, v201, 2, v202")
        e(f"v_lshl_add_u32 v{vV}, v213, 7, v210"); e.raw(f"s_add_u32 s36, s31, {slotV(0)*S}"); e(f"v_add_u32 v{vV}, s36, v{vV}")
        e(f"v_lshl_add_u32 v{vWO}, v213, 7, v209"); e.raw(f"s_add_u32 s36, s31, {SLOT_WO[0]*S}"); e(f"v_add_u32 v{vWO}, s36, v{vWO}")
        e.raw("s_mov_b32 s38, 0x3db8aa3b")
        e.raw("s_mov_b32 s39, 0x41000000")
        e.raw(f"s_mov_b32 s40, {2*S}"); e.raw(f"s_mov_b32 s41, {(-3*S) & 0xffffffff}")
        mK = sum(1 << t for t in range(15) if slotK(t + 2) < slotK(t + 1))
        mV = sum(1 << t for t in range(14) if slotV(t + 1) < slotV(t))
        e.raw(f"s_mov_b32 s42, {mK}"); e.raw(f"s_mov_b32 s43, {mV}")
        e.raw("s_waitcnt lgkmcnt(0)")
        if o.tlb:
            e.raw("s_lshl_b32 s56, s21, 3"); e.raw("s_add_u32 s56, s56, s20"); e.raw("s_lshl_b32 s56, s56, 19")
            e.raw("v_mov_b32 v196, s56"); e.raw(f"s_mul_i32 s57, s23, {256*896}"); e.raw("v_mov_b32 v197, s57")
            e.raw("s_cmp_lg_u32 s26, 0"); e.raw("s_cbranch_scc1 L_notlb")
            e.raw("global_load_dword v198, v196, s[6:7]"); e.raw("global_load_dword v198, v196, s[8:9]"); e.raw("global_load_dword v198, v197, s[12:13]")
            e.label("L_notlb")
        e.raw("s_mov_b32 s32, s18"); e.raw("s_mov_b32 s33, s19"); e.raw(f"s_mov_b32 s34, {PART_BYTES}"); e.raw("s_mov_b32 s35, 0x20000")
        e.raw("s_mov_b32 s52, s14"); e.raw("s_mov_b32 s53, s15"); e.raw(f"s_mov_b32 s54, {1024*896}"); e.raw("s_mov_b32 s55, 0x20000")
        e.raw("s_mul_i32 s45, s25, 56"); e.raw("s_lshl_b32 s46, s26, 1"); e.raw("s_add_u32 s45, s45, s46"); e.raw("s_lshl_b32 s45, s45, 14")
        e.raw("s_lshl_b32 s46, s23, 10"); e.raw("s_add_u32 s45, s45, s46")
        e.raw("s_lshl_b32 s46, s27, 17")
        if o.fused: self.flag_init(e); self.flag_mark_setup(e)

        var = {}
        def addr(reg, want):
            cur = var.get(reg, 0)
            if cur != want:
                e(f"v_xor_b32 v{reg}, {cur ^ want}, v{reg}")
                var[reg] = want

        def pipeline(items, cyc, cuts, first_limit, fill, pending=(), tail_pending=0, on_cut=None, after_pending=None):
            F = len(cyc)
            st = {"nr": 0, "lim": first_limit}
            def reads(upto):
                while st["nr"] < min(st["lim"], len(items)) and st["nr"] <= upto:
                    items[st["nr"]][0](cyc[st["nr"] % F]); st["nr"] += 1
            reads(F - 1 - len(pending))
            for k, p in enumerate(pending):
                p(); reads(F - len(pending) + k)
            if after_pending: after_pending()
            for i in range(len(items) - tail_pending):
                if i in cuts:
                    assert st["nr"] == st["lim"], (i, st)
                    e.drain(); e.raw("s_barrier")
                    if on_cut: on_cut(i)
                    st["lim"] = cuts[i]
                    reads(i + F - 1)
                if o.pairwait and i % 2 == 0 and i + 1 < st["nr"]:
                    e.need(regs_of(v4(fr(cyc[(i + 1) % F]))))
                items[i][1](cyc[i % F])
                reads(i + F)
                for f in fill.get(i, []): f()
            assert st["nr"] == len(items)

        XF = 64
        def xread(s, kk):
            def f():
                addr(vX, kk * 32)
                e(f"ds_read_b128 {v4(XF + 16*s + 4*kk)}, v{vX} offset:{s*8192}")
            return f
        items = []
        for s in range(7):
            for T in range(4):
                for kk in range(4):
                    def rd(b, s=s, T=T, kk=kk):
                        if T == 0 and kk == 0 and s > 0:
                            d = (SLOT_WQ[s] - SLOT_WQ[s - 1]) * S
                            e(f"v_add_u32 v{vWQ}, {d & 0xffffffff}, v{vWQ}")
                        e(f"ds_read_b64_tr_b16 v[{fr(b)}:{fr(b)+1}], v{vWQ} offset:{T*8192+kk*2048}")
                        e(f"ds_read_b64_tr_b16 v[{fr(b)+2}:{fr(b)+3}], v{vWQ} offset:{T*8192+kk*2048+512}")
                    def mf(b, s=s, T=T, kk=kk):
                        c = "0" if (s == 0 and kk == 0) else v16(16 * T)
                        e(f"{MF} {v16(16*T)}, {v4(fr(b))}, {v4(XF+16*s+4*kk)}, {c}")
                    items.append((rd, mf))
        self.stamp(e, 1)
        e.raw("s_barrier")
        self.stamp(e, 2)
        for kk in range(4): xread(0, kk)()
        fill = {}
        def xcut(i):
            if i == 14:
                for kk in (3, 2, 1, 0): xread(1, kk)()
        xs = [(s, kk) for kk in range(4) for s in range(2, 7)]
        for n, (s, kk) in enumerate(xs): fill.setdefault(16 + n // 2, []).append(xread(s, kk))
        cuts = {16 * s - 2: 16 * (s + 1) for s in range(1, 7)}
        cuts[110] = 112
        def cvtT(T):
            base = (176 + 8 * T) if T < 2 else (208 + 8 * (T - 2))
            return [lambda i=i, base=base, T=T: e(f"v_cvt_pk_bf16_f32 v{base+i}, v{16*T+2*i}, v{16*T+2*i+1}") for i in range(8)]
        c0 = cvtT(0); c1 = cvtT(1)
        for i in range(8): fill.setdefault(104 + i // 3, []).append(c0[i])
        for i in range(8): fill.setdefault(108 + i // 3, []).append(c1[i])
        for i in range(64): fill.setdefault(66 + i // 2, []).append(lambda i=i: e(f"v_mov_b32 v{64+i}, 0"))
        def qxaddr():
            e.raw("s_lshl_b32 s47, s29, 14"); e.raw(f"s_add_u32 s47, s47, {SLOT_WQ[6]*S}"); e.raw("s_lshl_b32 s48, s30, 11"); e.raw("s_add_u32 s48, s48, s47")
            e(f"v_add_u32 v195, s48, v{lane16}")
            e(f"v_add_u32 v{t0}, s47, v{lane16}")
        fill.setdefault(100, []).append(qxaddr)
        pipeline(items, [0, 1, 2, 3, 4, 5], cuts, 16, fill, on_cut=xcut)
        for T in range(2):
            for h in range(2): e(f"ds_write_b128 v195, {v4(176+8*T+4*h)} offset:{(4*T+h)*1024}")
        for f in cvtT(2): f()
        for h in range(2): e(f"ds_write_b128 v195, {v4(208+4*h)} offset:{(8+h)*1024}")
        for f in cvtT(3): f()
        for h in range(2): e(f"ds_write_b128 v195, {v4(216+4*h)} offset:{(12+h)*1024}")
        if o.tlb: e.raw("s_waitcnt vmcnt(0)")
        e.drain(); e.raw("s_barrier")
        self.stamp(e, 3)
        korder = [4 * cb + kq for kq in range(4) for cb in range(4)]
        def kitems(Sd):
            its = []
            for n, ks in enumerate(korder):
                def rd(b, ks=ks):
                    addr(vK, (ks & 3) * 32)
                    e(f"ds_read_b128 {v4(fr(b))}, v{vK} offset:{(ks>>2)*8192}")
                def mf(b, ks=ks, n=n):
                    e(f"{MF} {v16(Sd)}, {v4(fr(b))}, {v4(Q+4*ks)}, {'0' if n == 0 else v16(Sd)}")
                its.append((rd, mf))
            return its
        its = kitems(S0)
        for ks in korder[:4]: e(f"ds_read_b128 {v4(Q+4*ks)}, v{t0} offset:{ks*1024}")
        fill = {}
        for n, ks in enumerate(korder[4:]):
            fill.setdefault(n // 2, []).append(lambda ks=ks: e(f"ds_read_b128 {v4(Q+4*ks)}, v{t0} offset:{ks*1024}"))
        for i in range(64): fill.setdefault(i // 4, []).append(lambda i=i: e(f"v_mov_b32 v{i}, 0"))
        pipeline(its, [0, 1, 2, 3, 4, 5], {}, 16, fill)
        addr(vK, 0)
        e(f"v_add_u32 v{vK}, {((slotK(1)-slotK(0))*S) & 0xffffffff}, v{vK}")
        for i in range(8): e(f"v_mov_b32 v{fr(4)+i}, 0")
        for i in range(4): e(f"v_mov_b32 v{S1+4+i}, 0")
        e(f"v_mov_b32 v{vl}, 0")
        def maxtree(Sx):
            ops = [lambda: e(f"v_max3_f32 v{mx}, v{Sx}, v{Sx+1}, v{Sx+2}")]
            for i in range(3, 15, 2): ops.append(lambda i=i: e(f"v_max3_f32 v{mx}, v{mx}, v{Sx+i}, v{Sx+i+1}"))
            ops.append(lambda: e(f"v_max_f32 v{mx}, v{mx}, v{Sx+15}"))
            return ops
        for f in maxtree(S0): f()
        e(f"v_mov_b32 v{t0}, v{mx}"); e.raw("s_nop 1"); e(f"v_permlane32_swap_b32 v{mx}, v{t0}"); e.raw("s_nop 0")
        e(f"v_max_f32 v{mx}, v{mx}, v{t0}")
        e(f"v_mul_f32 v{negm}, s38, v{mx}"); e(f"v_sub_f32 v{negm}, 0, v{negm}")
        for i in range(16): e(f"v_fma_f32 v{S0+i}, v{S0+i}, s38, v{negm}")
        e(f"v_mov_b32 v{mx}, 0")
        e.raw("s_mov_b32 s49, 0")
        self.segs.append(("pre", list(e.L)))

        def vitems(Sp):
            its = []
            for kk in range(2):
                for bp in ((0, 1) if kk == 0 else (1, 0)):
                    for cb in range(4):
                        tp = 4 * bp + cb
                        def rd(b, kk=kk, bp=bp, cb=cb):
                            addr(vV, bp * 64)
                            e(f"ds_read_b64_tr_b16 v[{fr(b)}:{fr(b)+1}], v{vV} offset:{cb*8192+kk*2048}")
                            e(f"ds_read_b64_tr_b16 v[{fr(b)+2}:{fr(b)+3}], v{vV} offset:{cb*8192+kk*2048+1024}")
                        def mf(b, kk=kk, tp=tp):
                            e(f"{MF} {v16(O+16*tp)}, {v4(fr(b))}, {v4(Sp+4*kk)}, {v16(O+16*tp)}")
                        its.append((rd, mf))
            return its
        def softmax_ops(Sc):
            ex = [lambda i=i: e(f"v_exp_f32 v{Sc+i}, v{Sc+i}") for i in range(16)]
            ad = [lambda i=i: e(f"v_add_f32 v{vl}, v{vl}, v{Sc+i}") for i in range(16)]
            cv = [lambda j=j: e(f"v_cvt_pk_bf16_f32 v{Sc+j}, v{Sc+2*j}, v{Sc+2*j+1}") for j in range(8)]
            return ex, ad, cv
        def check(par):
            def f():
                e(f"v_cmp_lt_f32 vcc, s39, v{mx}")
                e.raw(f"s_cbranch_vccnz L_rare{par}")
                e.label(f"L_back{par}")
            return f
        def advance(reg, smask):
            return [lambda: e.raw(f"s_bitcmp1_b32 s{smask}, 0"), lambda: e.raw("s_cselect_b32 s47, s41, s40"), lambda: e.raw(f"s_lshr_b32 s{smask}, s{smask}, 1"),
                    lambda: (addr(reg, 0), e(f"v_add_u32 v{reg}, s47, v{reg}"))]
        def step(par, tag):
            Sc, Sn = (S0, S1) if par == 0 else (S1, S0)
            cyc = [0, 1, 2, 3, 4, 5] if par == 0 else [4, 5, 2, 3, 0, 1]
            prev = vitems(Sn)
            pend = [lambda: prev[14][1](cyc[4]), lambda: prev[15][1](cyc[5])]
            its = kitems(Sn) + vitems(Sc)
            ex, ad, cv = softmax_ops(Sc)
            fill = {}
            eg = o.expgaps
            for i in range(16):
                fill.setdefault(eg[i] + 1, []).append(ad[i])
            for i in range(16):
                fill.setdefault(eg[i], []).append(ex[i])
            for j in range(8): fill.setdefault(eg[2 * j + 1] + 1, []).append(cv[j])
            for k, f in enumerate(advance(vK, 42)): fill.setdefault(o.advK + k // 2, []).append(f)
            mt = maxtree(Sn)
            fm = [lambda i=i: e(f"v_fma_f32 v{Sn+i}, v{Sn+i}, s38, v{negm}") for i in range(16)]
            ops = fm[:3] + [mt[0]]
            for k in range(6): ops += fm[3 + 2 * k: 5 + 2 * k] + [mt[1 + k]]
            ops += [fm[15], mt[7]]
            for f, g in zip(ops, o.fmagaps): fill.setdefault(g, []).append(f)
            for k, f in enumerate(advance(vV, 43)): fill.setdefault(26 + k, []).append(f)
            e.raw("s_barrier")
            pipeline(its, cyc, {}, 32, fill, pending=pend, tail_pending=2, after_pending=check(tag))
            if o.fused: self.flag_mark_site(e, tag)
            e.drain()
        e.raw(".p2align 3")
        e.label("L_loop")
        m0 = len(e.L)
        step(0, "A")
        e.raw("s_cmp_eq_u32 s49, 7"); e.raw("s_cbranch_scc1 L_tail")
        m1 = len(e.L)
        step(1, "B")
        e.raw("s_add_u32 s49, s49, 1"); e.raw("s_branch L_loop")
        m2 = len(e.L)
        A_, B_ = e.L[m0:m1], e.L[m1:m2]
        self.segs.append(("pre+A", self.segs[0][1][-40:] + A_))
        self.segs.append(("A+B+A", A_ + B_ + A_))
        def rare(tag, Sc):
            e.label(f"L_rare{tag}")
            k = len(e.L)
            e(f"v_mov_b32 v{t0}, v{mx}"); e.raw("s_nop 1"); e(f"v_permlane32_swap_b32 v{mx}, v{t0}"); e.raw("s_nop 0")
            e(f"v_max3_f32 v{t0}, v{mx}, v{t0}, 0")
            e(f"v_sub_f32 v{negm}, v{negm}, v{t0}")
            e(f"v_exp_f32 v{t1}, -v{t0}")
            for i in range(16): e(f"v_sub_f32 v{Sc+i}, v{Sc+i}, v{t0}")
            e(f"v_mul_f32 v{vl}, v{vl}, v{t1}")
            for i in range(128): e(f"v_mul_f32 v{i}, v{i}, v{t1}")
            e.raw("s_nop 1")
            e.raw(f"s_branch L_back{tag}")
            self.segs.append((f"rare{tag}", [f"{MF} {v16(48)}, {v4(fr(0))}, {v4(S0)}, {v16(48)}", "s_nop 0", "s_nop 0"] + e.L[k:]))
        rare("A", S0); rare("B", S1); rare("C", S1)
        if o.fused: self.flag_mark_code(e, "A"); self.flag_mark_code(e, "B")

        e.raw(".p2align 3")
        e.label("L_tail")
        m3 = len(e.L)
        self.stamp(e, 4)
        e(f"v_add_u32 v{vV}, {((slotV(15) - slotV(14) - 2)*S) & 0xffffffff}, v{vV}")
        e(f"v_mbcnt_lo_u32_b32 v{vK}, -1, 0"); e(f"v_mbcnt_hi_u32_b32 v{vK}, -1, v{vK}"); e(f"v_lshlrev_b32 v{vK}, 4, v{vK}")
        e.raw(f"s_mul_i32 s47, s30, {(OXB-OXA)*S}"); e.raw("s_lshl_b32 s48, s29, 14")
        e.raw(f"s_add_u32 s50, s48, {OXA*S}"); e.raw("s_add_u32 s50, s50, s47")
        e.raw(f"s_add_u32 s51, s48, {OXB*S}"); e.raw("s_sub_u32 s51, s51, s47")
        Sc, Sn = S1, S0
        cyc = [4, 5, 2, 3, 0, 1]
        prev = vitems(Sn)
        pend = [lambda: prev[14][1](cyc[4]), lambda: prev[15][1](cyc[5])]
        its = vitems(Sc)
        ex, ad, cv = softmax_ops(Sc)
        def first_half():
            check("C")()
            for i in range(8):
                ex[i]()
                if i: ad[i - 1]()
                if i >= 2 and i % 2 == 0: cv[i // 2 - 1]()
            ex[8](); ad[7](); cv[3]()
            e.raw("s_nop 0")
            ex[9]()
        fill = {}
        fill[0] = [ad[8], ex[10], ad[9]]
        fill[1] = [cv[4], ex[11], ad[10]]
        fill[2] = [ex[12], ad[11], cv[5]]
        fill[3] = [ex[13], ad[12]]
        fill[4] = [ex[14], ad[13], cv[6]]
        fill[5] = [ex[15], ad[14]]
        vown, vpar, sa = 192, 193, 194
        fill[6] = [ad[15], cv[7], lambda: e(f"v_mov_b32 v{t0}, v{vl}"), lambda: e(f"v_add_u32 v{vpar}, s51, v{vK}"), lambda: e(f"v_add_u32 v{vown}, s50, v{vK}")]
        fill[7] = [lambda: e(f"v_permlane32_swap_b32 v{vl}, v{t0}"), lambda: e.raw("s_nop 0"), lambda: e(f"v_add_f32 v{vl}, v{vl}, v{t0}"),
                   lambda: e(f"ds_write_b64 v{vpar}, v[{negm}:{vl}]")]
        def stats_read(i):
            e(f"ds_read_b64 v[196:197], v{vown}")
        fill[12] = [lambda: e(f"v_min_f32 v198, v{negm}, v196"), lambda: e(f"v_sub_f32 v199, v198, v{negm}"), lambda: e(f"v_sub_f32 v200, v198, v196"),
                    lambda: e("v_exp_f32 v199, v199")]
        fill[13] = [lambda: e("v_exp_f32 v200, v200"), lambda: e(f"v_mul_f32 v201, v{vl}, v199"), lambda: e("v_fma_f32 v201, v197, v200, v201"), lambda: e("v_rcp_f32 v201, v201")]
        fill[14] = [lambda: e(f"v_mul_f32 v{sa}, v199, v201")]
        e.raw("s_barrier")
        pipeline(its, cyc, {10: 16}, 16, fill, pending=pend, after_pending=first_half, on_cut=stats_read)
        for tp in (4, 5, 6, 7):
            for i in range(0, 16, 2):
                r = 16 * tp + i
                e(f"v_pk_mul_f32 v[{r}:{r+1}], v[{r}:{r+1}], v[{sa}:{sa+1}] op_sel_hi:[1,0]")
            for q in range(4):
                e(f"ds_write_b128 v{vown}, {v4(16*tp+4*q)} offset:{((tp-4)*4+q)*1024}")
        e.drain(); e.raw("s_barrier")
        self.stamp(e, 5)
        for n in range(16): e(f"ds_read_b128 {v4(Q+4*n)}, v{vpar} offset:{n*1024}")
        for n in range(8):
            for i in range(0, 8, 2):
                r = 8 * n + i
                e(f"v_pk_fma_f32 v[{r}:{r+1}], v[{r}:{r+1}], v[{sa}:{sa+1}], v[{Q+r}:{Q+r+1}] op_sel_hi:[1,0,1]")
            for i in range(4): e(f"v_cvt_pk_bf16_f32 v{64+4*n+i}, v{8*n+2*i}, v{8*n+2*i+1}")
            e(f"ds_write_b128 v{vpar}, {v4(64+4*n)} offset:{n*1024}")
        e(f"v_mov_b32 v{t0}, v{vown}")
        if o.fused:
            e.raw(f"v_bfe_u32 v{mx}, v{vK}, 4, 4"); e.raw(f"v_add_u32 v{mx}, s68, v{mx}"); e.raw(f"global_load_ubyte v{t1}, v{mx}, s[16:17] sc0 sc1")
        if o.oprio: e.raw(f"s_setprio {o.oprio}")
        e.drain(); e.raw("s_barrier")
        self.stamp(e, 6)
        items = []
        for s in range(7):
            acc = S0 if s % 2 == 0 else S1
            for n in range(16):
                f = n if s % 2 == 0 else (n + 8) % 16
                def rd(b, s=s, n=n, f=f):
                    if n == 0 and s > 0:
                        e(f"v_add_u32 v{vWO}, {((SLOT_WO[s]-SLOT_WO[s-1])*S) & 0xffffffff}, v{vWO}")
                    addr(vWO, (f >> 3) * 4096)
                    off = ((f & 7) >> 1) * 8192 + (f & 1) * 2048
                    e(f"ds_read_b64_tr_b16 v[{fr(b)}:{fr(b)+1}], v{vWO} offset:{off}")
                    e(f"ds_read_b64_tr_b16 v[{fr(b)+2}:{fr(b)+3}], v{vWO} offset:{off+1024}")
                def mf(b, acc=acc, n=n, f=f):
                    e(f"{MF} {v16(acc)}, {v4(fr(b))}, {v4(64+4*f)}, {'0' if n == 0 else v16(acc)}")
                items.append((rd, mf))
        def store_ops(s):
            acc = S0 if s % 2 == 0 else S1
            pk = 8 * (s % 2)
            ops = [lambda i=i: e(f"v_cvt_pk_bf16_f32 v{pk+i}, v{acc+2*i}, v{acc+2*i+1}") for i in range(8)]
            def st():
                e.raw("s_add_u32 s47, s45, s46"); e.raw("s_add_u32 s48, s47, 0x4000")
                e(f"buffer_store_dwordx4 {v4(pk)}, v{vK}, s[32:35], s47 offen {o.stpol}")
                e(f"buffer_store_dwordx4 {v4(pk+4)}, v{vK}, s[32:35], s48 offen {o.stpol}")
                e.raw("s_add_u32 s46, s46, 0x20000"); e.raw(f"s_cmp_ge_u32 s46, {7<<17}"); e.raw("s_cselect_b32 s46, 0, s46")
            return ops + [st]
        fill = {}
        for n in range(8): fill.setdefault(n // 2, []).append(lambda n=n: e(f"ds_read_b128 {v4(96+4*n)}, v{t0} offset:{n*1024}"))
        for s in range(6):
            for k, f in enumerate(store_ops(s)): fill.setdefault(16 * (s + 1) + 4 + k // 2, []).append(f)
        cuts = {16 * s - 2: 16 * (s + 1) for s in range(1, 7)}
        pipeline(items, [0, 1, 2, 3, 4, 5], cuts, 16, fill)
        e.raw("s_nop 7"); e.raw("s_nop 3")
        for f in store_ops(6): f()
        if not o.fused: self.stamp(e, 7)
        if o.fused: self.fused_reduce(e, vK)
        self.segs.append(("A+tail", A_ + e.L[m3:]))
        if o.amp:
            for l in ["s_memrealtime s[72:73]", "s_waitcnt lgkmcnt(0)", "s_sub_u32 s74, s72, s70", f"s_mul_i32 s74, s74, {o.amp}", "s_add_u32 s74, s74, s72", "s_mov_b32 s75, 0",
               "L_spin:", "s_memrealtime s[76:77]", "s_waitcnt lgkmcnt(0)", "s_add_u32 s75, s75, 1", "s_cmp_gt_u32 s75, 2000000", "s_cbranch_scc1 L_end",
               "s_sub_u32 s78, s76, s74", "s_cmp_lt_i32 s78, 0", "s_cbranch_scc1 L_spin"]: e.raw(l)
        if self.ts:
            e.raw("s_cmp_lg_u32 s26, 0"); e.raw("s_cbranch_scc1 L_end")
            self.stamp_store(e, 8, 0)

    def sum16(self, e, base, pol, srd_in, srd_out, s_img, v16l, vrow, extra=None):
        e.raw(f"s_lshl_b32 s57, s{s_img}, 14")
        for h in range(16):
            if h % 4 == 0 and h: e.raw("s_add_u32 s57, s57, 0x1000")
            e.raw(f"buffer_load_dwordx4 v[{base+16+4*h}:{base+19+4*h}], v{v16l}, s[{srd_in}:{srd_in+3}], s57 offen offset:{(h&3)*1024} {pol}")
        if extra: e.raw(extra)
        e.raw(f"s_mov_b32 s58, {(2**32 + 55)//56}"); e.raw(f"s_mul_hi_u32 s59, s{s_img}, s58"); e.raw("s_mul_i32 s60, s59, 56"); e.raw(f"s_sub_u32 s60, s{s_img}, s60")
        e.raw("s_lshl_b32 s61, s59, 6"); e.raw("s_bfe_u32 s62, s60, 0x10001"); e.raw("s_lshl_b32 s62, s62, 5"); e.raw("s_add_u32 s61, s61, s62"); e.raw("s_mul_i32 s61, s61, 896")
        e.raw("s_lshr_b32 s62, s60, 3"); e.raw("s_lshl_b32 s62, s62, 7"); e.raw("s_add_u32 s61, s61, s62")
        e.raw("s_bfe_u32 s62, s60, 0x10002"); e.raw("s_lshl_b32 s62, s62, 6"); e.raw("s_add_u32 s61, s61, s62")
        e.raw("s_and_b32 s62, s60, 1"); e.raw("s_lshl_b32 s62, s62, 5"); e.raw("s_add_u32 s61, s61, s62")
        e.raw("s_mov_b32 s63, 0xffff0000")
        for h in range(16):
            e.raw(f"s_waitcnt vmcnt({15-h+(1 if extra else 0)})")
            for i in range(4):
                r = base + 16 + 4 * h + i
                if h == 0:
                    e.raw(f"v_lshlrev_b32 v{base+8+2*i}, 16, v{r}"); e.raw(f"v_and_b32 v{base+9+2*i}, s63, v{r}")
                else:
                    e.raw(f"v_lshlrev_b32 v{base+5}, 16, v{r}"); e.raw(f"v_and_b32 v{base+6}, s63, v{r}")
                    e.raw(f"v_add_f32 v{base+8+2*i}, v{base+8+2*i}, v{base+5}"); e.raw(f"v_add_f32 v{base+9+2*i}, v{base+9+2*i}, v{base+6}")
        for i in range(4): e.raw(f"v_cvt_pk_bf16_f32 v{base+16+i}, v{base+8+2*i}, v{base+9+2*i}")
        e.raw(f"buffer_store_dwordx4 v[{base+16}:{base+19}], v{vrow}, s[{srd_out}:{srd_out+3}], s61 offen")

    def flag_init(self, e):
        e.raw("s_lshl_b32 s68, s25, 4")
        e.raw("s_lshl_b32 s69, s25, 9"); e.raw(f"s_add_u32 s69, s69, {FLAG_OFF}")
        e.raw("s_lshl_b32 s57, s23, 2"); e.raw("s_add_u32 s57, s57, s69")
        e.raw("v_lshl_add_u32 v196, v0, 7, s57"); e.raw("v_mov_b32 v197, 0")
        e.raw("s_lshl_b32 s57, s26, 7"); e.raw("s_add_u32 s69, s69, s57")
        e.raw("s_cmp_lg_u32 s26, 0"); e.raw("s_cbranch_scc1 L_noclr")
        e.raw("s_mov_b64 exec, 15")
        e.raw("global_store_dword v196, v197, s[18:19] sc0 sc1")
        e.raw("s_mov_b64 exec, -1")
        e.label("L_noclr")
    def flag_mark_setup(self, e):
        e.raw("s_min_u32 s57, s23, 14"); e.raw("s_lshr_b32 s58, s57, 1")
        e.raw("s_cmp_lg_u32 s26, 0"); e.raw("s_cselect_b32 s58, 99, s58")
        e.raw("s_bitcmp1_b32 s57, 0"); e.raw("s_cselect_b32 s86, 99, s58"); e.raw("s_cselect_b32 s87, s58, 99")
        e.raw("s_add_u32 s88, s68, s23")
    def flag_mark_site(self, e, tag):
        e.raw(f"s_cmp_eq_u32 s49, s{86 if tag == 'A' else 87}"); e.raw(f"s_cbranch_scc1 L_mark{tag}")
        e.label(f"L_marked{tag}")
    def flag_mark_code(self, e, tag):
        e.label(f"L_mark{tag}")
        e.raw("v_mov_b32 v253, s88"); e.raw("v_mov_b32 v254, 1")
        e.raw("s_waitcnt vmcnt(0)")
        e.raw("s_mov_b64 exec, 1")
        e.raw("global_store_byte v253, v254, s[16:17] sc0 sc1")
        e.raw("s_mov_b64 exec, -1")
        e.raw(f"s_branch L_marked{tag}")

    def fused_reduce(self, e, v16l):
        o = self.o
        DBG = "global_load_ubyte v27, v252, s[16:17] sc0 sc1"
        e.raw(f"v_lshrrev_b32 v20, 4, v{v16l}")
        e.raw("v_and_b32 v21, 31, v20"); e.raw("v_mul_u32_u24 v21, 896, v21"); e.raw("v_lshrrev_b32 v22, 5, v20"); e.raw("v_lshl_add_u32 v21, v22, 4, v21")
        e.raw("v_and_b32 v22, 15, v20"); e.raw("v_lshl_add_u32 v22, v22, 2, s69")
        e.raw("s_lshl_b32 s57, s23, 2"); e.raw("s_add_u32 s57, s57, s69")
        e.raw("v_mov_b32 v23, s57"); e.raw("v_mov_b32 v24, 1")
        e.raw("s_lshl_b32 s65, 1, s23"); e.raw("s_and_b32 s65, s65, 0x3fff")
        e.raw("s_mul_i32 s64, s25, 56"); e.raw("s_lshl_b32 s58, s26, 1"); e.raw("s_add_u32 s64, s64, s58")
        e.raw("s_lshl_b32 s56, 16, s26")
        e.raw("s_mov_b32 s59, 0"); e.raw("s_mov_b32 s67, 0")
        e.raw("s_waitcnt vmcnt(0)")
        self.stamp(e, 6)
        e.raw("s_mov_b64 exec, 1")
        e.raw(f"global_store_dword v23, v24, s[18:19] {o.fpol}")
        e.raw("s_mov_b64 exec, -1")
        e.raw("v_mov_b32 v27, v254")
        e.raw("s_cmp_lg_u32 s65, 0"); e.raw("s_cbranch_scc1 L_chk")
        e.raw("s_waitcnt vmcnt(0)")
        e.raw(DBG)
        e.raw("s_waitcnt vmcnt(0)")
        e.raw("v_and_b32 v25, s56, v27"); e.raw("v_cmp_ne_u32 vcc, 0, v25")
        e.raw("s_cbranch_vccz L_done")
        e.label("L_chk")
        e.raw("v_cmp_eq_u32 vcc, 0, v27")
        e.raw("s_cbranch_vccz L_poll")
        e.raw("s_sleep 8")
        e.raw(DBG)
        e.raw("s_add_u32 s59, s59, 1")
        e.raw("s_waitcnt vmcnt(0)")
        e.raw(f"s_cmp_lt_u32 s59, {o.spinmax}"); e.raw("s_cbranch_scc1 L_chk")
        e.raw("s_branch L_giveup")
        e.label("L_poll")
        e.raw(f"global_load_dword v25, v22, s[18:19] {o.ppol}")
        e.raw("s_add_u32 s59, s59, 1")
        e.raw("s_waitcnt vmcnt(0)")
        e.raw("v_cmp_eq_u32 vcc, 0, v25")
        e.raw("s_cbranch_vccz L_go")
        if o.sleep: e.raw(f"s_sleep {o.sleep}")
        e.raw(f"s_cmp_lt_u32 s59, {o.spinmax}"); e.raw("s_cbranch_scc1 L_poll")
        e.label("L_giveup")
        e.raw("s_cmp_eq_u32 s65, 0"); e.raw("s_cbranch_scc1 L_done")
        e.raw("s_and_b32 s60, s23, 3"); e.raw("s_lshl_b32 s60, s60, 3"); e.raw("s_lshl_b32 s60, s56, s60"); e.raw("v_mov_b32 v24, s60")
        e.raw("s_and_b32 s60, s23, 12"); e.raw("s_add_u32 s60, s60, s68"); e.raw("v_mov_b32 v26, s60")
        e.raw("s_mov_b64 exec, 1")
        e.raw("global_atomic_or v26, v24, s[16:17] sc1")
        e.raw("s_mov_b64 exec, -1")
        e.raw("s_waitcnt vmcnt(0)")
        e.raw(DBG)
        e.raw("s_waitcnt vmcnt(0)")
        e.raw("global_load_dword v25, v22, s[18:19] sc0 sc1")
        e.raw("s_waitcnt vmcnt(0)")
        e.raw("v_min_u32 v25, v25, v27")
        e.raw("v_cmp_eq_u32 vcc, 0, v25")
        e.raw("s_cbranch_vccnz L_done")
        e.label("L_go")
        self.stamp(e, 5)
        e.raw("s_cmp_lg_u32 s65, 0"); e.raw("s_cbranch_scc1 L_slices")
        e.raw(DBG)
        e.raw("s_waitcnt vmcnt(0)")
        e.raw("s_branch L_more")
        e.label("L_slices")
        e.raw("s_ff1_i32_b32 s66, s65"); e.raw("s_bitset0_b32 s65, s66"); e.raw("s_bitset1_b32 s67, s66")
        e.raw("s_lshr_b32 s58, s66, 1"); e.raw("s_lshl_b32 s58, s58, 3"); e.raw("s_and_b32 s66, s66, 1"); e.raw("s_add_u32 s66, s66, s58"); e.raw("s_add_u32 s66, s66, s64")
        self.sum16(e, 32, "sc1", 32, 52, 66, v16l, 21, extra=DBG)
        e.raw("s_waitcnt vmcnt(1)")
        e.label("L_more")
        e.raw("v_and_b32 v25, s56, v27"); e.raw("v_cmp_ne_u32 vcc, 0, v25")
        e.raw("s_nop 1")
        e.raw("s_and_b32 s58, vcc_lo, 0x3fff"); e.raw("s_andn2_b32 s58, s58, s67"); e.raw("s_or_b32 s65, s65, s58")
        e.raw("s_cbranch_scc1 L_slices")
        e.label("L_done")
        self.stamp(e, 7)

    def reduce_kernel(self, e):
        e.raw("s_cmp_ge_u32 s2, 224"); e.raw("s_cbranch_scc1 R_end")
        e.raw("s_load_dwordx2 s[4:5], s[0:1], 40"); e.raw("s_load_dwordx2 s[6:7], s[0:1], 56")
        e.raw("v_lshrrev_b32 v1, 6, v0"); e.raw("v_and_b32 v0, 63, v0"); e.raw("v_readfirstlane_b32 s3, v1")
        e.raw("v_lshlrev_b32 v2, 4, v0")
        e.raw("v_and_b32 v3, 31, v0"); e.raw("v_mul_u32_u24 v3, 896, v3"); e.raw("v_lshrrev_b32 v4, 5, v0"); e.raw("v_lshl_add_u32 v3, v4, 4, v3")
        e.raw("s_lshl_b32 s16, s2, 2"); e.raw("s_add_u32 s16, s16, s3")
        e.raw("s_waitcnt lgkmcnt(0)")
        e.raw("s_mov_b32 s8, s6"); e.raw("s_mov_b32 s9, s7"); e.raw(f"s_mov_b32 s10, {PART_BYTES}"); e.raw("s_mov_b32 s11, 0x20000")
        e.raw("s_mov_b32 s12, s4"); e.raw("s_mov_b32 s13, s5"); e.raw(f"s_mov_b32 s14, {1024*896}"); e.raw("s_mov_b32 s15, 0x20000")
        self.sum16(e, 0, "", 8, 12, 16, 2, 3)
        e.label("R_end"); e.raw("s_endpgm")

def kd(name, vgpr, sgpr):
    return [ '.section .rodata,"a"', ".p2align 6", f".amdhsa_kernel {name}", f"  .amdhsa_next_free_vgpr {vgpr}", f"  .amdhsa_next_free_sgpr {sgpr}",
        f"  .amdhsa_accum_offset {(vgpr+3)//4*4}", "  .amdhsa_group_segment_fixed_size 0", "  .amdhsa_kernarg_size 64", "  .amdhsa_user_sgpr_count 2",
        "  .amdhsa_user_sgpr_kernarg_segment_ptr 1", "  .amdhsa_system_sgpr_workgroup_id_x 1", ".end_amdhsa_kernel"]

def build(o):
    g = G(o)
    K1 = NAME + "_kernel"; K2 = "gqa_reduce_kernel"
    out = [f"; Fused GQA block: Q-proj + flash attention + O-proj partials + head reduction. Generated by gen/gen.py"]
    if o.fused: out += [f"; @launch grid=(256,1,1) block=(512,1,1) lds=163840"]
    else: out += [f"; @launch kernel={K1} grid=(256,1,1) block=(512,1,1) lds=163840", f"; @launch kernel={K2} grid=(224,1,1) block=(256,1,1) lds=0"]
    out += ['.amdgcn_target "amdgcn-amd-amdhsa--gfx950"', ".text", f".globl {K1}", ".p2align 8", f".type {K1},@function", f"{K1}:", "L_start:"]
    e = Em(); g.prologue(e); g.loader(e); ld = list(e.L)
    e2 = Em(); g.compute(e2)
    out += e.L + e2.L + ["L_end:", "s_endpgm", "L_code_end:"]
    errs = check_hazards(ld, "loader")
    if not o.fused:
        e3 = Em(); g.reduce_kernel(e3)
        out += [f".globl {K2}", ".p2align 8", f".type {K2},@function", f"{K2}:"] + e3.L
        errs += check_hazards(e3.L, "reduce")
    out += kd(K1, 256, 96)
    if not o.fused: out += kd(K2, 80, 72)
    for n, l in g.segs: errs += check_hazards(l, n)
    for x in dict.fromkeys(errs): print("HAZARD", x, file=sys.stderr)
    return "\n".join(out) + "\n"

def opts(argv=None):
    ap = argparse.ArgumentParser()
    ap.add_argument("-o", default="cdna_kernels/" + NAME + ".s")
    ap.add_argument("--ts", action="store_true")
    ap.add_argument("--stpol", default="sc1")
    ap.add_argument("--amp", type=int, default=0)
    ap.add_argument("--fused", type=int, default=1)
    ap.add_argument("--pairwait", type=int, default=1)
    ap.add_argument("--lookdef", type=int, default=8)
    ap.add_argument("--look", default="")
    ap.add_argument("--lag", default="0211")
    ap.add_argument("--spinmax", type=int, default=20000)
    ap.add_argument("--lstamps", default="1,2,4,6,7,9,33")
    ap.add_argument("--sleep", type=int, default=4)
    ap.add_argument("--tlb", type=int, default=0)
    ap.add_argument("--oprio", type=int, default=0)
    ap.add_argument("--spf", default="")
    ap.add_argument("--spr", type=int, default=4)
    ap.add_argument("--spb", type=int, default=0)
    ap.add_argument("--setup_at", type=int, default=7)
    ap.add_argument("--mapb", type=int, default=0)
    ap.add_argument("--rotb", type=int, default=1)
    ap.add_argument("--fpol", default="sc0 sc1")
    ap.add_argument("--ppol", default="sc0 sc1")
    a = ap.parse_args(argv)
    a.spf = [(x.split(":")[0], int(x.split(":")[1]), int(x.split(":")[2])) for x in a.spf.split(",") if x]
    a.lstamps = [int(x) for x in a.lstamps.split(",")]
    a.look = [tuple(map(int, x.split(":"))) for x in a.look.split(",") if x]
    a.lag = tuple(int(c) for c in a.lag)
    a.expgaps = list(range(16))
    a.advK = 17
    a.fmagaps = []
    for g in range(19, 26): a.fmagaps += [g, g]
    for g in range(26, 30): a.fmagaps += [g, g, g]
    return a

if __name__ == "__main__":
    a = opts()
    open(a.o, "w").write(build(a))
```
